```python
import torch

def _softmax(x, axis=-1):
    return torch.softmax(x, dim=axis)
def _gelu(x):
    return torch.nn.functional.gelu(x, approximate="tanh")
def _silu(x):
    return torch.nn.functional.silu(x)
def _sigmoid(x):
    return torch.sigmoid(x)
def _layernorm(x, axis=-1, eps=1e-5):
    m = x.mean(dim=axis, keepdim=True)
    v = x.var(dim=axis, keepdim=True, unbiased=False)
    return (x - m) / torch.sqrt(v + eps)
def _scatter_add(tgt, idx, src, axis=0):
    return tgt.clone().index_add_(axis, idx, src)
def _segment_sum(src, seg, n):
    out = torch.zeros((n,) + src.shape[1:], dtype=src.dtype)
    return out.index_add_(0, seg, src)
def _pad(x, pw):
    flat = tuple(v for pair in reversed(pw) for v in pair)
    return torch.nn.functional.pad(x, flat)

kernel_name = 'parallel_sum__mha_block__swiglu_ffn__prompt'

def setup_inputs():

    _w = (lambda a: (lambda t: t.to(torch.bfloat16) if t.is_floating_point() else t)(torch.as_tensor(a)))
    def _A_setup():
        B, S, D, H = 1, 2048, 512, 32
        return {
            "x": _w((lambda *s: torch.randn(*s, dtype=torch.bfloat16) * 0.05)(B, S, D)),
            "wqkv": _w((lambda *s: torch.randn(*s, dtype=torch.bfloat16) * 0.2)(D, 3 * D)),
            "wo": _w((lambda *s: torch.randn(*s, dtype=torch.bfloat16) * 0.1)(D, D)),
        }
    _A_in = _A_setup()

    def _B_setup():
        B, S, D, F = 1, 2048, 512, 1376
        return {
            "x": _w((lambda *s: torch.randn(*s, dtype=torch.bfloat16) * 0.05)(B, S, D)),
            "w_gate": _w((lambda *s: torch.randn(*s, dtype=torch.bfloat16) * 0.1)(D, F)),
            "w_up": _w((lambda *s: torch.randn(*s, dtype=torch.bfloat16) * 0.1)(D, F)),
            "w_down": _w((lambda *s: torch.randn(*s, dtype=torch.bfloat16) * 0.1)(F, D)),
        }
    _B_in = _B_setup()

    return {
        "A_x": _A_in["x"],
        "A_wqkv": _A_in["wqkv"],
        "A_wo": _A_in["wo"],
        "B_x": _B_in["x"],
        "B_w_gate": _B_in["w_gate"],
        "B_w_up": _B_in["w_up"],
        "B_w_down": _B_in["w_down"],
    }

def reference(A_x, A_wqkv, A_wo, B_x, B_w_gate, B_w_up, B_w_down):
    def _A_ref(x, wqkv, wo):
        B, S, D = x.shape
        H = 32
        Dh = D // H
        qkv = (lambda x, *d: x.permute(*d))((x @ wqkv).reshape(B, S, 3, H, Dh), 2, 0, 3, 1, 4)
        q, k, v = qkv[0], qkv[1], qkv[2]
        scores = torch.einsum("bhqd,bhkd->bhqk", q, k) * (Dh ** -0.5)
        p = _softmax(scores, axis=-1)
        o = torch.einsum("bhqk,bhkd->bhqd", p, v)
        return (lambda x, *d: x.permute(*d))(o, 0, 2, 1, 3).reshape(B, S, D) @ wo

    def _B_ref(x, w_gate, w_up, w_down):
        g = _silu(x @ w_gate)
        u = x @ w_up
        return (g * u) @ w_down

    x = A_x
    xn = _layernorm(x, axis=-1)
    return x + _A_ref(xn, A_wqkv, A_wo) + _B_ref(xn, B_w_gate, B_w_up, B_w_down)
```

```python
import re

TRANS = ("v_exp_f32", "v_log_f32", "v_rcp_f32", "v_rsq_f32", "v_sqrt_f32", "v_sin_f32", "v_cos_f32", "v_rcp_iflag_f32")
MFMA_PASSES = {"v_mfma_f32_32x32x16_bf16": 8, "v_mfma_f32_16x16x32_bf16": 4, "v_mfma_f32_32x32x8_bf16": 8, "v_mfma_f32_16x16x16_bf16": 4}

REG_RE = re.compile(r"\b([vsa])(\d+)\b|\b([vsa])\[(\d+):(\d+)\]|\b(vcc|exec|m0|scc)\b")

def regs_of(tok):
    out = set()
    for m in REG_RE.finditer(tok):
        if m.group(1):
            out.add((m.group(1), int(m.group(2))))
        elif m.group(3):
            for i in range(int(m.group(4)), int(m.group(5)) + 1):
                out.add((m.group(3), i))
        else:
            out.add((m.group(6), 0))
    return out

class Inst:
    __slots__ = ("text", "op", "ops", "wr", "rd", "kind", "label", "target")
    def __init__(self, text):
        self.text = text
        self.label = None
        self.target = None
        t = text.split(";")[0].strip()
        if t.endswith(":"):
            self.label = t[:-1]; self.op = None; self.kind = "label"; self.wr = set(); self.rd = set(); self.ops = []
            return
        parts = t.split(None, 1)
        self.op = parts[0]
        rest = parts[1] if len(parts) > 1 else ""
        self.ops = [o.strip() for o in rest.split(",")]
        op = self.op
        ops = self.ops
        wr = set(); rd = set()
        def R(i): return regs_of(ops[i]) if i < len(ops) else set()
        allr = [regs_of(o) for o in ops]
        if op.startswith("v_mfma"):
            self.kind = "mfma"; wr = R(0); rd = R(1) | R(2) | R(3)
        elif op.startswith("v_cmp"):
            self.kind = "valu"; wr = R(0); rd = R(1) | R(2)
            if op.startswith("v_cmpx"): wr = wr | {("exec", 0)}
        elif op in ("v_readfirstlane_b32", "v_readlane_b32"):
            self.kind = "valu"; wr = R(0); rd = R(1) | R(2)
        elif op.startswith("v_permlane32_swap") or op.startswith("v_permlane16_swap"):
            self.kind = "valu"; wr = R(0) | R(1); rd = R(0) | R(1)
        elif op.startswith("v_add_co") or op.startswith("v_sub_co") or op.startswith("v_addc_co") or op.startswith("v_subb_co"):
            self.kind = "valu"; wr = R(0) | R(1); rd = set().union(*allr[2:])
        elif op.startswith("v_div_scale"):
            self.kind = "valu"; wr = R(0) | R(1); rd = set().union(*allr[2:])
        elif op.startswith("v_"):
            self.kind = "valu"; wr = R(0); rd = set().union(*allr[1:]) if len(allr) > 1 else set()
            if op.startswith("v_fmac") or op.startswith("v_dot2c") or op.startswith("v_pk_fmac"): rd |= R(0)
            if op.startswith("v_cndmask") and len(ops) == 3: rd |= {("vcc", 0)}
            if op.startswith("v_div_fmas"): rd |= {("vcc", 0)}
            if op.startswith("v_writelane"): rd |= R(0)
            if "dst_unused:UNUSED_PRESERVE" in t: rd |= R(0)
        elif op.startswith("buffer_load") or op.startswith("global_load"):
            self.kind = "vmem"
            if " lds" in t or op.startswith("global_load_lds"):
                rd = set().union(*allr) | {("m0", 0)}
            else:
                wr = R(0); rd = set().union(*allr[1:])
        elif op.startswith("buffer_store") or op.startswith("global_store") or op.startswith("buffer_atomic") or op.startswith("global_atomic"):
            self.kind = "vmem"; rd = set().union(*allr)
        elif op.startswith("ds_read") or op.startswith("ds_bpermute") or op.startswith("ds_permute") or op.startswith("ds_swizzle"):
            self.kind = "ds"; wr = R(0); rd = set().union(*allr[1:])
        elif op.startswith("ds_write"):
            self.kind = "ds"; rd = set().union(*allr)
        elif op.startswith("s_load") or op.startswith("s_memtime") or op.startswith("s_buffer_load"):
            self.kind = "smem"; wr = R(0); rd = set().union(*allr[1:]) if len(allr) > 1 else set()
        elif op.startswith("s_cbranch") or op == "s_branch":
            self.kind = "branch"; self.target = ops[0]
        elif op.startswith("s_cmp") or op in ("s_waitcnt", "s_barrier", "s_nop", "s_endpgm", "s_setprio", "s_sleep"):
            self.kind = "salu"; rd = set().union(*allr) if op.startswith("s_cmp") else set()
        elif op.startswith("s_"):
            self.kind = "salu"; wr = R(0); rd = set().union(*allr[1:]) if len(allr) > 1 else set()
            if "saveexec" in op: wr |= {("exec", 0)}
        else:
            raise ValueError("unknown op " + text)
        self.wr = wr; self.rd = rd
    def states(self):
        if self.kind == "label": return 0
        if self.op == "s_nop": return int(self.ops[0], 0) + 1
        return 1

def vg(s): return {r for r in s if r[0] in ("v", "a")}
def sg(s): return {r for r in s if r[0] in ("s", "vcc")}

def need(prod, cons):
    n = 0
    pk, ck = prod.kind, cons.kind
    if pk == "valu":
        w = vg(prod.wr)
        if ck == "mfma" and (w & cons.rd): n = max(n, 2)
        if ck == "valu":
            if prod.op in TRANS and (w & cons.rd) and cons.op not in TRANS: n = max(n, 1)
            if prod.op in TRANS and (w & cons.rd): n = max(n, 1)
            if cons.op in ("v_readfirstlane_b32", "v_readlane_b32") and (w & cons.rd): n = max(n, 1)
            if ("dpp" in cons.text or "quad_perm" in cons.text or "row_" in cons.text) and (w & cons.rd): n = max(n, 2)
            if cons.op.startswith("v_permlane") and (w & cons.rd): n = max(n, 2)
            if ("sdwa" in prod.op or "op_sel" in prod.text) and (w & (cons.rd | cons.wr)): n = max(n, 1)
        ws = sg(prod.wr)
        if ws:
            if ck == "valu" and (ws & cons.rd):
                n = max(n, 4 if cons.op in ("v_readlane_b32", "v_writelane_b32", "v_div_fmas_f32") else 2)
            if ck == "vmem" and (ws & cons.rd): n = max(n, 5)
            if ck in ("salu", "smem", "branch") and (ws & cons.rd): n = max(n, 4)
        if ("exec", 0) in prod.wr: n = max(n, 5 if ck in ("valu", "mfma") else 0)
    if pk == "mfma":
        p = MFMA_PASSES[prod.op]
        d = prod.wr
        big = {4: 8, 8: 12}[p]
        if ck == "mfma":
            a_b = regs_of(cons.ops[1]) | regs_of(cons.ops[2])
            c = regs_of(cons.ops[3])
            if d & a_b: n = max(n, big)
            if d & c:
                if not (c == d and cons.op == prod.op): n = max(n, {4: 6, 8: 10}[p])
            if (d & cons.wr) and not (d & c): n = max(n, big)
        elif ck in ("valu", "vmem", "ds"):
            if d & (cons.rd | cons.wr): n = max(n, big)
        c = regs_of(prod.ops[3])
        if ck == "valu" and (c & cons.wr): n = max(n, {4: 3, 8: 7}[p])
    if pk == "salu":
        if ("m0", 0) in prod.wr and ("m0", 0) in cons.rd: n = max(n, 1)
    if pk == "vmem" and ("store" in prod.op or "atomic" in prod.op) and ("x4" in prod.op or "x3" in prod.op):
        data = regs_of(prod.ops[0]) if prod.op.startswith("buffer") else regs_of(prod.ops[1])
        if data & cons.wr: n = max(n, 2)
    return n

WINDOW = 22

class Asm:
    def __init__(self):
        self.lines = []
    def __call__(self, text):
        for ln in text.strip("\n").split("\n"):
            ln = ln.strip()
            if ln and not ln.startswith(";"): self.lines.append(ln)
    def label(self, l): self.lines.append(l + ":")
    def finalize(self):
        insts = [Inst(l) for l in self.lines]
        changed = True
        while changed:
            changed = False
            labels = {i.label: k for k, i in enumerate(insts) if i.label}
            out = []
            def scan(hist, cons):
                dist = 0; req = 0
                for p in reversed(hist):
                    if dist >= WINDOW: break
                    if p.kind != "label":
                        r = need(p, cons)
                        if r > dist: req = max(req, r - dist)
                    dist += p.states()
                return req
            for k, ins in enumerate(insts):
                if ins.kind != "label":
                    r = scan(out, ins)
                    if r > 0:
                        while r > 0:
                            c = min(r, 8)
                            out.append(Inst(f"s_nop {c-1}")); r -= c
                        changed = True
                out.append(ins)
                if ins.kind == "branch" and ins.target in labels:
                    t = labels[ins.target]
                    hist = list(out)
                    dist_extra = 0; worst = 0
                    sim = list(hist)
                    for j in range(t, min(t + WINDOW + 2, len(insts))):
                        c = insts[j]
                        if c.kind != "label":
                            r = scan(sim, c)
                            r2 = scan(sim[len(hist):], c)
                            if r > r2: worst = max(worst, r)
                        sim.append(c)
                    if worst > 0:
                        br = out.pop()
                        while worst > 0:
                            c = min(worst, 8)
                            out.append(Inst(f"s_nop {c-1}")); worst -= c
                        out.append(br)
                        changed = True
            insts = out
        return "\n".join(("" if i.kind == "label" else "  ") + i.text for i in insts)
```

```python
import sys
sys.path.insert(0, "work")
from asmgen import Asm

NAME = "parallel_sum__mha_block__swiglu_ffn__prompt"
WS_Q = 0
WS_K = 2 << 20
WS_V = 4 << 20
WS_H = 6 << 20
WS_O = 12 << 20
H_BYTES = 2048 * 1376 * 2
C_SCALE = 0.25 * 1.4426950408889634

import struct
def f32hex(x): return "0x%08x" % struct.unpack("<I", struct.pack("<f", x))[0]

ROUND_SCORES = True

def srd(a, d, ptr_lo, nbytes, off=0):
    if off:
        a(f"s_add_u32 s{d}, s{ptr_lo}, {off}")
        a(f"s_addc_u32 s{d+1}, s{ptr_lo+1}, 0")
        a(f"s_and_b32 s{d+1}, s{d+1}, 0xffff")
    else:
        a(f"s_mov_b32 s{d}, s{ptr_lo}")
        a(f"s_and_b32 s{d+1}, s{ptr_lo+1}, 0xffff")
    a(f"s_mov_b32 s{d+2}, {nbytes}")
    a(f"s_mov_b32 s{d+3}, 0x20000")

def bf16r(a, dst, src, tmp=None):
    a(f"v_cvt_pk_bf16_f32 v{dst}, v{src}, v{src}")
    a(f"v_lshlrev_b32 v{dst}, 16, v{dst}")

XN_STRIDE = 1040
K1_NST = 5
K1_RING = 64 * XN_STRIDE
K1_LDS = K1_RING + 8 * K1_NST * 2048

def gen_k1():
    a = Asm()
    a("s_cmp_ge_u32 s2, 288")
    a("s_cbranch_scc1 K1_END")
    a("s_load_dwordx4 s[4:7], s[0:1], 0")
    a("s_load_dwordx4 s[8:11], s[0:1], 32")
    a("s_load_dwordx2 s[12:13], s[0:1], 72")
    a("s_and_b32 s14, s2, 31")
    a("s_lshr_b32 s15, s2, 5")
    a("v_lshrrev_b32 v1, 6, v0")
    a("v_readfirstlane_b32 s16, v1")
    a("v_and_b32 v2, 63, v0")
    a("s_waitcnt lgkmcnt(0)")
    srd(a, 20, 4, 2048 * 1024)
    srd(a, 24, 12, 0x10000000)
    a("v_lshrrev_b32 v3, 4, v2")
    a("v_and_b32 v4, 15, v2")
    a("s_lshl_b32 s17, s14, 6")
    a("s_lshl_b32 s18, s16, 3")
    a("s_add_u32 s17, s17, s18")
    for b in range(2):
        a(f"v_add_u32 v5, {4*b}, v3")
        a("v_add_u32 v6, s17, v5")
        a("v_lshlrev_b32 v6, 10, v6")
        a("v_lshl_add_u32 v6, v4, 4, v6")
        for c in range(4):
            a(f"buffer_load_dwordx4 v[{8+4*c}:{11+4*c}], v6, s[20:23], 0 offen offset:{256*c}")
        a("v_add_u32 v7, s18, v5")
        a(f"v_mul_u32_u24 v7, {XN_STRIDE}, v7")
        a("v_lshl_add_u32 v7, v4, 4, v7")
        a("s_waitcnt vmcnt(0)")
        for d in range(16):
            a(f"v_lshlrev_b32 v{32+2*d}, 16, v{8+d}")
            a(f"v_and_b32 v{33+2*d}, 0xffff0000, v{8+d}")
        a("v_add_f32 v64, v32, v33")
        for j in range(2, 32): a(f"v_add_f32 v64, v64, v{32+j}")
        def red16(r, t):
            for ctl in ("quad_perm:[1,0,3,2]", "quad_perm:[2,3,0,1]", "row_half_mirror", "row_mirror"):
                a(f"v_add_f32_dpp v{t}, v{r}, v{r} {ctl} row_mask:0xf bank_mask:0xf")
                a(f"v_mov_b32 v{r}, v{t}")
        red16(64, 65)
        a(f"v_mul_f32 v64, {f32hex(1/512)}, v64")
        a("v_sub_f32 v66, v32, v64")
        a("v_mul_f32 v67, v66, v66")
        for j in range(1, 32):
            a(f"v_sub_f32 v66, v{32+j}, v64")
            a("v_fmac_f32 v67, v66, v66")
        red16(67, 65)
        a(f"v_mul_f32 v67, {f32hex(1/512)}, v67")
        bf16r(a, 64, 64)
        bf16r(a, 67, 67)
        a(f"v_add_f32 v67, {f32hex(1e-5)}, v67")
        bf16r(a, 67, 67)
        a("v_sqrt_f32 v67, v67")
        bf16r(a, 67, 67)
        a("v_rcp_f32 v68, v67")
        for d in range(16):
            for h in range(2):
                r = 32 + 2 * d + h
                a(f"v_sub_f32 v{r}, v{r}, v64")
            a(f"v_cvt_pk_bf16_f32 v69, v{32+2*d}, v{33+2*d}")
            a(f"v_lshlrev_b32 v{32+2*d}, 16, v69")
            a(f"v_and_b32 v{33+2*d}, 0xffff0000, v69")
            for h in range(2):
                r = 32 + 2 * d + h
                a(f"v_mul_f32 v70, v{r}, v68")
                a(f"v_fma_f32 v71, -v70, v67, v{r}")
                a(f"v_fma_f32 v{r}, v71, v68, v70")
            a(f"v_cvt_pk_bf16_f32 v{8+d}, v{32+2*d}, v{33+2*d}")
        for c in range(4):
            a(f"ds_write_b128 v7, v[{8+4*c}:{11+4*c}] offset:{256*c}")
    a("s_waitcnt lgkmcnt(0)")
    a("s_barrier")
    a("s_lshl_b32 s17, s15, 3")
    a("s_add_u32 s17, s17, s16")
    a("s_cmp_ge_u32 s17, 67")
    a("s_cbranch_scc1 K1_END")
    a("v_and_b32 v3, 31, v2")
    a("v_lshrrev_b32 v4, 5, v2")
    a("v_and_b32 v5, 15, v2")
    a("v_bfe_u32 v6, v2, 4, 1")
    a(f"v_mul_u32_u24 v10, {XN_STRIDE}, v3")
    a("v_lshl_add_u32 v10, v4, 4, v10")
    a("v_lshrrev_b32 v7, 2, v5")
    a("v_lshl_add_u32 v7, v4, 3, v7")
    a("v_lshlrev_b32 v7, 6, v7")
    a("v_and_b32 v8, 3, v5")
    a("v_lshlrev_b32 v8, 3, v8")
    a("v_lshl_add_u32 v8, v6, 5, v8")
    a("v_add_u32 v11, v7, v8")
    a(f"s_mul_i32 s18, s16, {K1_NST*2048}")
    a(f"s_add_u32 s18, s18, {K1_RING}")
    a("v_add_u32 v11, s18, v11")
    a("v_lshrrev_b32 v7, 2, v2")
    a("v_and_b32 v8, 3, v2")
    a("v_lshlrev_b32 v8, 4, v8")
    a("s_cmp_lt_u32 s17, 24")
    a("s_cbranch_scc0 K1_FFN")
    srd(a, 28, 6, 512 * 3072)
    srd(a, 32, 6, 512 * 3072)
    a("s_mov_b32 s36, 3072")
    a("s_lshl_b32 s37, s17, 7")
    a("s_add_u32 s38, s37, 64")
    a("s_branch K1_SEL")
    a.label("K1_FFN")
    srd(a, 28, 8, 512 * 2752)
    srd(a, 32, 10, 512 * 2752)
    a("s_mov_b32 s36, 2752")
    a("s_sub_u32 s37, s17, 24")
    a("s_lshl_b32 s37, s37, 6")
    a("s_mov_b32 s38, s37")
    a.label("K1_SEL")
    a("v_mul_lo_u32 v12, v7, s36")
    a("v_add_u32 v12, v12, v8")
    a("v_add_u32 v13, s38, v12")
    a("v_add_u32 v12, s37, v12")
    a("s_lshl_b32 s39, s36, 4")
    a("s_mov_b32 s40, 0")
    ACC = 64
    for r in range(64): a(f"v_mov_b32 v{ACC+r}, 0")
    def dma(stage):
        a(f"s_add_u32 m0, s18, {stage*2048}")
        a("buffer_load_dwordx4 v12, s[28:31], s40 offen lds")
        a(f"s_add_u32 m0, s18, {stage*2048+1024}")
        a("buffer_load_dwordx4 v13, s[32:35], s40 offen lds")
        a("s_add_u32 s40, s40, s39")
    def loop(tag, vorient):
        for st in range(K1_NST - 1): dma(st)
        XA = [16, 32]
        def reads(ks, base):
            st = ks % K1_NST
            for rt in range(2):
                a(f"ds_read_b128 v[{base+4*rt}:{base+4*rt+3}], v10 offset:{ks*32 + rt*32*XN_STRIDE}")
            for u in range(2):
                o = st * 2048 + u * 1024
                a(f"ds_read_b64_tr_b16 v[{base+8+4*u}:{base+9+4*u}], v11 offset:{o}")
                a(f"ds_read_b64_tr_b16 v[{base+10+4*u}:{base+11+4*u}], v11 offset:{o+256}")
        a(f"s_waitcnt vmcnt({2*(K1_NST-2)})")
        reads(0, XA[0])
        for ks in range(32):
            cur = XA[ks % 2]; nxt = XA[(ks + 1) % 2]
            a("s_waitcnt lgkmcnt(0)")
            if ks + K1_NST - 1 < 32:
                dma((ks + K1_NST - 1) % K1_NST)
            if ks + 1 < 32:
                outstanding = min(32, ks + K1_NST) - (ks + 2)
                a(f"s_waitcnt vmcnt({2*max(outstanding,0)})")
                reads(ks + 1, nxt)
            for rt in range(2):
                for u in range(2):
                    d = ACC + 16 * (2 * rt + u)
                    xa = f"v[{cur+4*rt}:{cur+4*rt+3}]"; wa = f"v[{cur+8+4*u}:{cur+11+4*u}]"
                    A, B = (xa, wa) if vorient else (wa, xa)
                    a(f"v_mfma_f32_32x32x16_bf16 v[{d}:{d+15}], {A}, {B}, v[{d}:{d+15}]")
    a("s_cmp_ge_u32 s17, 16")
    a("s_cselect_b32 s41, 1, 0")
    a("s_cmp_lt_u32 s17, 24")
    a("s_cselect_b32 s42, 1, 0")
    a("s_and_b32 s41, s41, s42")
    a("s_cmp_eq_u32 s41, 1")
    a("s_cbranch_scc1 K1_VLOOP")
    loop("T", False)
    a("s_cmp_ge_u32 s17, 24")
    a("s_cbranch_scc1 K1_EPI_H")
    a("s_lshr_b32 s43, s17, 3")
    a("s_lshl_b32 s43, s43, 21")
    a("s_and_b32 s44, s17, 7")
    a("s_lshl_b32 s44, s44, 18")
    a("s_add_u32 s43, s43, s44")
    a("s_lshl_b32 s44, s14, 11")
    a("s_add_u32 s43, s43, s44")
    a("v_lshlrev_b32 v14, 4, v2")
    a("v_add_u32 v14, s43, v14")
    for rt in range(2):
        for u in range(2):
            d = ACC + 16 * (2 * rt + u)
            for hh in range(2):
                for j in range(4):
                    a(f"v_cvt_pk_bf16_f32 v{16+j}, v{d+8*hh+2*j}, v{d+8*hh+2*j+1}")
                off = (2 * u + hh) * 65536 + rt * 1024
                a(f"s_mov_b32 s45, {off}")
                a("buffer_store_dwordx4 v[16:19], v14, s[24:27], s45 offen")
    a("s_branch K1_END")
    a.label("K1_EPI_H")
    a("s_sub_u32 s43, s17, 24")
    a("s_lshl_b32 s43, s43, 6")
    a(f"s_add_u32 s43, s43, {WS_H}")
    a("s_lshl_b32 s44, s14, 6")
    a("v_add_u32 v14, s44, v3")
    a("s_mov_b32 s45, 2752")
    a("v_mul_lo_u32 v14, v14, s45")
    a("v_lshl_add_u32 v14, v4, 3, v14")
    a("v_add_u32 v14, s43, v14")
    a(f"s_mov_b32 s46, {f32hex(-1.4426950408889634)}")
    for rt in range(2):
        dg = ACC + 16 * (2 * rt); du = dg + 16
        for q in range(4):
            for p in range(2):
                r0 = 4 * q + 2 * p
                a(f"v_cvt_pk_bf16_f32 v20, v{dg+r0}, v{dg+r0+1}")
                a(f"v_cvt_pk_bf16_f32 v21, v{du+r0}, v{du+r0+1}")
                a("v_lshlrev_b32 v22, 16, v20")
                a("v_and_b32 v23, 0xffff0000, v20")
                a("v_lshlrev_b32 v24, 16, v21")
                a("v_and_b32 v25, 0xffff0000, v21")
                for g in (22, 23):
                    a(f"v_mul_f32 v26, s46, v{g}")
                    a("v_exp_f32 v26, v26")
                    a("v_add_f32 v26, 1.0, v26")
                    a("v_rcp_f32 v26, v26")
                    a(f"v_mul_f32 v{g}, v{g}, v26")
                a("v_cvt_pk_bf16_f32 v20, v22, v23")
                a("v_lshlrev_b32 v22, 16, v20")
                a("v_and_b32 v23, 0xffff0000, v20")
                a("v_mul_f32 v22, v22, v24")
                a("v_mul_f32 v23, v23, v25")
                a(f"v_cvt_pk_bf16_f32 v{16+p}, v22, v23")
            a(f"s_mov_b32 s47, {rt*32*2752 + q*16}")
            a("buffer_store_dwordx2 v[16:17], v14, s[24:27], s47 offen")
    a("s_branch K1_END")
    a.label("K1_VLOOP")
    loop("V", True)
    a("s_sub_u32 s43, s17, 16")
    a("s_lshl_b32 s43, s43, 18")
    a(f"s_add_u32 s43, s43, {WS_V}")
    a("s_lshl_b32 s44, s14, 11")
    a("s_add_u32 s43, s43, s44")
    a("v_lshrrev_b32 v14, 4, v3")
    a("v_lshlrev_b32 v14, 16, v14")
    a("v_lshl_add_u32 v14, v4, 8, v14")
    a("v_lshl_add_u32 v14, v5, 4, v14")
    a("v_add_u32 v14, s43, v14")
    for rt in range(2):
        for u in range(2):
            d = ACC + 16 * (2 * rt + u)
            for g in range(2):
                for j in range(4):
                    a(f"v_cvt_pk_bf16_f32 v{16+j}, v{d+8*g+2*j}, v{d+8*g+2*j+1}")
                off = 2 * u * 65536 + rt * 1024 + g * 512
                a(f"s_mov_b32 s45, {off}")
                a("buffer_store_dwordx4 v[16:19], v14, s[24:27], s45 offen")
    a.label("K1_END")
    a("s_endpgm")
    return a.finalize(), 128, 64

def gen_k2():
    a = Asm()
    a("s_cmp_ge_u32 s2, 256")
    a("s_cbranch_scc1 K2_END")
    a("s_load_dwordx2 s[12:13], s[0:1], 72")
    a("s_lshr_b32 s14, s2, 3")
    a("s_and_b32 s15, s2, 7")
    a("v_lshrrev_b32 v1, 6, v0")
    a("v_readfirstlane_b32 s16, v1")
    a("v_and_b32 v2, 63, v0")
    a("s_waitcnt lgkmcnt(0)")
    srd(a, 24, 12, 0x10000000)
    a("v_lshlrev_b32 v3, 4, v2")
    a("s_lshl_b32 s17, s14, 16")
    a("s_lshl_b32 s18, s16, 13")
    a("s_add_u32 s19, s17, s18")
    a(f"s_add_u32 s20, s19, {WS_K}")
    a(f"s_add_u32 s21, s19, {WS_V}")
    for c in range(8):
        a(f"s_add_u32 m0, s18, {c*1024}")
        a("buffer_load_dwordx4 v3, s[24:27], s20 offen lds")
        a(f"s_add_u32 m0, s18, {65536 + c*1024}")
        a("buffer_load_dwordx4 v3, s[24:27], s21 offen lds")
        a("s_add_u32 s20, s20, 1024")
        a("s_add_u32 s21, s21, 1024")
    a("s_lshl_b32 s22, s15, 3")
    a("s_add_u32 s22, s22, s16")
    a("s_lshl_b32 s23, s22, 10")
    a("s_add_u32 s23, s23, s17")
    a(f"s_add_u32 s23, s23, {WS_Q}")
    a("buffer_load_dwordx4 v[8:11], v3, s[24:27], s23 offen")
    a("v_and_b32 v4, 31, v2")
    a("v_lshrrev_b32 v5, 5, v2")
    a("v_and_b32 v6, 15, v2")
    a("v_lshlrev_b32 v6, 4, v6")
    a("v_lshl_add_u32 v6, v5, 8, v6")
    a("v_add_u32 v6, 0x10000, v6")
    a("v_cmp_gt_u32 s[30:31], 16, v4")
    a("v_cmp_eq_u32 vcc, 16, v4")
    a("v_mov_b32 v7, 0x3f803f80")
    a("v_cndmask_b32 v7, 0, v7, vcc")
    VOP = [40, 48]
    for b in VOP:
        for r in range(8): a(f"v_mov_b32 v{b+r}, v7")
    a("s_waitcnt vmcnt(0)")
    a("s_barrier")
    S0, S1 = 64, 80
    KOP = [12, 16]
    a("v_mov_b32 v20, 0xff800000")
    a("v_mov_b32 v21, 0xff800000")
    a("s_mov_b32 s28, 0")
    a("v_mov_b32 v22, v3")
    a.label("K2_P1")
    for t in range(4):
        a(f"ds_read_b128 v[{KOP[t%2]}:{KOP[t%2]+3}], v22 offset:{t*1024}")
    for t in range(4):
        S = (S0, S1)[t % 2]
        if t < 2:
            a(f"s_waitcnt lgkmcnt({3 - 2*t if t==0 else 2})")
        a(f"v_mfma_f32_32x32x16_bf16 v[{S}:{S+15}], v[{KOP[t%2]}:{KOP[t%2]+3}], v[8:11], 0")
        if t == 1:
            pass
    a.lines = a.lines[:-(4 + 4 + 2)]
    for t in range(4):
        S = (S0, S1)[t % 2]; m = 20 + (t % 2)
        a(f"ds_read_b128 v[{KOP[t%2]}:{KOP[t%2]+3}], v22 offset:{t*1024}")
        a("s_waitcnt lgkmcnt(0)")
        a(f"v_mfma_f32_32x32x16_bf16 v[{S}:{S+15}], v[{KOP[t%2]}:{KOP[t%2]+3}], v[8:11], 0")
        for j in range(8):
            a(f"v_max3_f32 v{m}, v{m}, v{S+2*j}, v{S+2*j+1}")
    a("v_add_u32 v22, 4096, v22")
    a("s_add_u32 s28, s28, 4")
    a("s_cmp_lt_u32 s28, 64")
    a("s_cbranch_scc1 K2_P1")
    a("v_max_f32 v20, v20, v21")
    a("v_mov_b32 v21, v20")
    a("v_permlane32_swap_b32 v20, v21")
    a("v_max_f32 v20, v20, v21")
    if ROUND_SCORES:
        a("v_add_u32 v20, 0x8000, v20")
        a("v_and_b32 v20, 0xffff0000, v20")
    a(f"v_mov_b32 v23, {f32hex(C_SCALE)}")
    a("v_mul_f32 v24, v20, v23")
    a("v_sub_f32 v24, 0, v24")
    OACC = 96
    for r in range(16): a(f"v_mov_b32 v{OACC+r}, 0")
    a("s_mov_b32 s28, 0")
    a("v_mov_b32 v22, v3")
    a("v_mov_b32 v25, v6")
    a.label("K2_P2")
    for t in range(2):
        S = (S0, S1)[t]; K = KOP[t]; V = VOP[t]
        a(f"ds_read_b128 v[{K}:{K+3}], v22 offset:{t*1024}")
        a("s_mov_b64 exec, s[30:31]")
        a(f"ds_read_b128 v[{V}:{V+3}], v25 offset:{t*1024}")
        a(f"ds_read_b128 v[{V+4}:{V+7}], v25 offset:{t*1024+512}")
        a("s_mov_b64 exec, -1")
        a("s_waitcnt lgkmcnt(0)")
        a(f"v_mfma_f32_32x32x16_bf16 v[{S}:{S+15}], v[{K}:{K+3}], v[8:11], 0")
        for j in range(16):
            if ROUND_SCORES:
                a(f"v_add_u32 v{S+j}, 0x8000, v{S+j}")
                a(f"v_and_b32 v{S+j}, 0xffff0000, v{S+j}")
            a(f"v_fma_f32 v{S+j}, v{S+j}, v23, v24")
            a(f"v_exp_f32 v{S+j}, v{S+j}")
        for j in range(8):
            a(f"v_cvt_pk_bf16_f32 v{26+j}, v{S+2*j}, v{S+2*j+1}")
        a(f"v_mfma_f32_32x32x16_bf16 v[{OACC}:{OACC+15}], v[{V}:{V+3}], v[26:29], v[{OACC}:{OACC+15}]")
        a(f"v_mfma_f32_32x32x16_bf16 v[{OACC}:{OACC+15}], v[{V+4}:{V+7}], v[30:33], v[{OACC}:{OACC+15}]")
    a("v_add_u32 v22, 2048, v22")
    a("v_add_u32 v25, 2048, v25")
    a("s_add_u32 s28, s28, 2")
    a("s_cmp_lt_u32 s28, 64")
    a("s_cbranch_scc1 K2_P2")
    a(f"v_mov_b32 v20, v{OACC+8}")
    a(f"v_mov_b32 v21, v{OACC+8}")
    a("v_permlane32_swap_b32 v20, v21")
    a("v_rcp_f32 v21, v20")
    for r in range(8):
        a(f"v_mul_f32 v26, v{OACC+r}, v21")
        a(f"v_fma_f32 v27, -v26, v20, v{OACC+r}")
        a(f"v_fma_f32 v{OACC+r}, v27, v21, v26")
    for j in range(4):
        a(f"v_cvt_pk_bf16_f32 v{26+j}, v{OACC+2*j}, v{OACC+2*j+1}")
    a("s_lshl_b32 s23, s22, 15")
    a("s_lshl_b32 s29, s14, 5")
    a("s_add_u32 s23, s23, s29")
    a(f"s_add_u32 s23, s23, {WS_O}")
    a("v_lshlrev_b32 v22, 10, v4")
    a("v_lshl_add_u32 v22, v5, 3, v22")
    a("buffer_store_dwordx2 v[26:27], v22, s[24:27], s23 offen")
    a("buffer_store_dwordx2 v[28:29], v22, s[24:27], s23 offen offset:16")
    a.label("K2_END")
    a("s_endpgm")
    return a.finalize(), 112, 64

K3_NST = 4
K3_LDS = 4 * K3_NST * 2048
def gen_k3():
    a = Asm()
    a("s_cmp_ge_u32 s2, 128")
    a("s_cbranch_scc1 K3_END")
    a("s_load_dwordx2 s[4:5], s[0:1], 0")
    a("s_load_dwordx2 s[6:7], s[0:1], 16")
    a("s_load_dwordx4 s[8:11], s[0:1], 48")
    a("s_load_dwordx2 s[12:13], s[0:1], 72")
    a("v_lshrrev_b32 v1, 6, v0")
    a("v_readfirstlane_b32 s16, v1")
    a("v_and_b32 v2, 63, v0")
    a("s_lshl_b32 s14, s2, 2")
    a("s_add_u32 s14, s14, s16")
    a("s_lshr_b32 s15, s14, 3")
    a("s_and_b32 s17, s14, 7")
    a("s_waitcnt lgkmcnt(0)")
    srd(a, 20, 4, 2048 * 1024)
    srd(a, 24, 10, 2048 * 1024)
    srd(a, 28, 6, 512 * 1024)
    srd(a, 32, 8, 1376 * 1024)
    srd(a, 36, 12, 2048 * 1024, WS_O)
    srd(a, 40, 12, H_BYTES, WS_H)
    a("v_and_b32 v3, 31, v2")
    a("v_lshrrev_b32 v4, 5, v2")
    a("v_and_b32 v5, 15, v2")
    a("v_bfe_u32 v6, v2, 4, 1")
    a("s_lshl_b32 s18, s15, 5")
    a("v_add_u32 v9, s18, v3")
    a("v_lshlrev_b32 v10, 10, v9")
    a("v_lshl_add_u32 v10, v4, 4, v10")
    a("s_mov_b32 s19, 2752")
    a("v_mul_lo_u32 v14, v9, s19")
    a("v_lshl_add_u32 v14, v4, 4, v14")
    a("v_lshrrev_b32 v7, 2, v5")
    a("v_lshl_add_u32 v7, v4, 3, v7")
    a("v_lshlrev_b32 v7, 6, v7")
    a("v_and_b32 v8, 3, v5")
    a("v_lshlrev_b32 v8, 3, v8")
    a("v_lshl_add_u32 v8, v6, 5, v8")
    a("v_add_u32 v11, v7, v8")
    a(f"s_mul_i32 s18, s16, {K3_NST*2048}")
    a("v_add_u32 v11, s18, v11")
    a("v_lshrrev_b32 v7, 2, v2")
    a("v_and_b32 v8, 3, v2")
    a("v_lshlrev_b32 v8, 4, v8")
    a("v_lshl_add_u32 v12, v7, 10, v8")
    a("s_lshl_b32 s19, s17, 7")
    a("v_add_u32 v12, s19, v12")
    a("v_add_u32 v13, 64, v12")
    ACC = 64
    for r in range(32): a(f"v_mov_b32 v{ACC+r}, 0")
    def phase(tag, wsrd, asrd, avoff, nsteps):
        a("s_mov_b32 s44, 0")
        a("s_mov_b32 s45, 0")
        a("s_mov_b32 s46, 0")
        def issue(st):
            a(f"s_add_u32 m0, s18, {st*2048}")
            a(f"buffer_load_dwordx4 v12, s[{wsrd}:{wsrd+3}], s44 offen lds")
            a(f"s_add_u32 m0, s18, {st*2048+1024}")
            a(f"buffer_load_dwordx4 v13, s[{wsrd}:{wsrd+3}], s44 offen lds")
            a(f"buffer_load_dwordx4 v[{16+4*st}:{19+4*st}], v{avoff}, s[{asrd}:{asrd+3}], s45 offen")
            a("s_add_u32 s44, s44, 16384")
            a("s_add_u32 s45, s45, 32")
        for st in range(K3_NST - 1): issue(st)
        a.label(f"K3_L{tag}")
        for st in range(K3_NST):
            issue((st + K3_NST - 1) % K3_NST)
            a(f"s_waitcnt vmcnt({3*(K3_NST-1)})")
            for u in range(2):
                o = st * 2048 + u * 1024
                a(f"ds_read_b64_tr_b16 v[{40+4*u}:{41+4*u}], v11 offset:{o}")
                a(f"ds_read_b64_tr_b16 v[{42+4*u}:{43+4*u}], v11 offset:{o+256}")
            a("s_waitcnt lgkmcnt(0)")
            for u in range(2):
                d = ACC + 16 * u
                a(f"v_mfma_f32_32x32x16_bf16 v[{d}:{d+15}], v[{40+4*u}:{43+4*u}], v[{16+4*st}:{19+4*st}], v[{d}:{d+15}]")
        a(f"s_add_u32 s46, s46, {K3_NST}")
        a(f"s_cmp_lt_u32 s46, {nsteps}")
        a(f"s_cbranch_scc1 K3_L{tag}")
        a("s_waitcnt vmcnt(0)")
    phase("O", 28, 36, 10, 32)
    phase("H", 32, 40, 14, 88)
    a("v_lshlrev_b32 v10, 10, v9")
    a("v_lshl_add_u32 v10, v4, 3, v10")
    a("v_add_u32 v10, s19, v10")
    for u in range(2):
        for q in range(4):
            a(f"buffer_load_dwordx2 v[{16+2*(4*u+q)}:{17+2*(4*u+q)}], v10, s[20:23], 0 offen offset:{u*64+q*16}")
    a("s_waitcnt vmcnt(0)")
    for u in range(2):
        for q in range(4):
            xr = 16 + 2 * (4 * u + q); d = ACC + 16 * u + 4 * q
            for p in range(2):
                a(f"v_lshlrev_b32 v40, 16, v{xr+p}")
                a(f"v_and_b32 v41, 0xffff0000, v{xr+p}")
                a(f"v_add_f32 v40, v40, v{d+2*p}")
                a(f"v_add_f32 v41, v41, v{d+2*p+1}")
                a(f"v_cvt_pk_bf16_f32 v{xr+p}, v40, v41")
            a(f"buffer_store_dwordx2 v[{xr}:{xr+1}], v10, s[24:27], 0 offen offset:{u*64+q*16}")
    a.label("K3_END")
    a("s_endpgm")
    return a.finalize(), 96, 64

def desc(name, nv, ns):
    return f""".amdhsa_kernel {name}
  .amdhsa_next_free_vgpr {nv}
  .amdhsa_next_free_sgpr {ns}
  .amdhsa_accum_offset {nv}
  .amdhsa_group_segment_fixed_size 0
  .amdhsa_kernarg_size 80
  .amdhsa_user_sgpr_count 2
  .amdhsa_user_sgpr_kernarg_segment_ptr 1
  .amdhsa_system_sgpr_workgroup_id_x 1
.end_amdhsa_kernel"""

def build(path):
    ks = [("k1_kernel", gen_k1(), 288, 512, K1_LDS), ("k2_kernel", gen_k2(), 256, 512, 131072), ("k3_kernel", gen_k3(), 128, 256, K3_LDS)]
    out = []
    for n, _, g, b, l in ks:
        out.append(f"; @launch kernel={n} grid=({g},1,1) block=({b},1,1) lds={l}")
    out += ['.amdgcn_target "amdgcn-amd-amdhsa--gfx950"', ".text"]
    for n, (txt, nv, ns), *_ in ks:
        out += [f".globl {n}", ".p2align 8", f".type {n},@function", f"{n}:", txt]
    out.append('.section .rodata,"a"')
    for n, (txt, nv, ns), *_ in ks:
        out += [".p2align 6", desc(n, nv, ns)]
    open(path, "w").write("\n".join(out) + "\n")

if __name__ == "__main__":
    if "noround" in sys.argv: ROUND_SCORES = False
    p = sys.argv[1]
    build(p)
```

```python
import sys
sys.path.insert(0, "work")
from asmgen import Asm

NAME = "parallel_sum__mha_block__swiglu_ffn__prompt"
WS_Q = 0
WS_K = 2 << 20
WS_V = 4 << 20
WS_H = 6 << 20
WS_O = 12 << 20
H_BYTES = 2048 * 1376 * 2
C_SCALE = 0.25 * 1.4426950408889634

import struct
def f32hex(x): return "0x%08x" % struct.unpack("<I", struct.pack("<f", x))[0]

ROUND_SCORES = True
LN_EXACT = False

def srd(a, d, ptr_lo, nbytes, off=0):
    if off:
        a(f"s_add_u32 s{d}, s{ptr_lo}, {off}")
        a(f"s_addc_u32 s{d+1}, s{ptr_lo+1}, 0")
        a(f"s_and_b32 s{d+1}, s{d+1}, 0xffff")
    else:
        a(f"s_mov_b32 s{d}, s{ptr_lo}")
        a(f"s_and_b32 s{d+1}, s{ptr_lo+1}, 0xffff")
    a(f"s_mov_b32 s{d+2}, {nbytes}")
    a(f"s_mov_b32 s{d+3}, 0x20000")

def bf16r(a, dst, src, tmp=None):
    if LN_EXACT: return
    a(f"v_cvt_pk_bf16_f32 v{dst}, v{src}, v{src}")
    a(f"v_lshlrev_b32 v{dst}, 16, v{dst}")

XN_STRIDE = 1040
K1_NST = 5
K1_RING = 64 * XN_STRIDE
K1_LDS = K1_RING + 8 * K1_NST * 2048

def gen_k1():
    a = Asm()
    a("s_cmp_ge_u32 s2, 288")
    a("s_cbranch_scc1 K1_END")
    a("s_load_dwordx4 s[4:7], s[0:1], 0")
    a("s_load_dwordx4 s[8:11], s[0:1], 32")
    a("s_load_dwordx2 s[12:13], s[0:1], 72")
    a("s_and_b32 s14, s2, 31")
    a("s_lshr_b32 s15, s2, 5")
    a("v_lshrrev_b32 v1, 6, v0")
    a("v_readfirstlane_b32 s16, v1")
    a("v_and_b32 v2, 63, v0")
    a("s_waitcnt lgkmcnt(0)")
    srd(a, 20, 4, 2048 * 1024)
    srd(a, 24, 12, 0x10000000)
    a("v_lshrrev_b32 v3, 4, v2")
    a("v_and_b32 v4, 15, v2")
    a("s_lshl_b32 s17, s14, 6")
    a("s_lshl_b32 s18, s16, 3")
    a("s_add_u32 s17, s17, s18")
    for b in range(2):
        a(f"v_add_u32 v5, {4*b}, v3")
        a("v_add_u32 v6, s17, v5")
        a("v_lshlrev_b32 v6, 10, v6")
        a("v_lshl_add_u32 v6, v4, 4, v6")
        for c in range(4):
            a(f"buffer_load_dwordx4 v[{8+4*c}:{11+4*c}], v6, s[20:23], 0 offen offset:{256*c}")
        a("v_add_u32 v7, s18, v5")
        a(f"v_mul_u32_u24 v7, {XN_STRIDE}, v7")
        a("v_lshl_add_u32 v7, v4, 4, v7")
        a("s_waitcnt vmcnt(0)")
        for d in range(16):
            a(f"v_lshlrev_b32 v{32+2*d}, 16, v{8+d}")
            a(f"v_and_b32 v{33+2*d}, 0xffff0000, v{8+d}")
        a("v_add_f32 v64, v32, v33")
        for j in range(2, 32): a(f"v_add_f32 v64, v64, v{32+j}")
        def red16(r, t):
            for ctl in ("quad_perm:[1,0,3,2]", "quad_perm:[2,3,0,1]", "row_half_mirror", "row_mirror"):
                a(f"v_add_f32_dpp v{t}, v{r}, v{r} {ctl} row_mask:0xf bank_mask:0xf")
                a(f"v_mov_b32 v{r}, v{t}")
        red16(64, 65)
        a(f"v_mul_f32 v64, {f32hex(1/512)}, v64")
        a("v_sub_f32 v66, v32, v64")
        a("v_mul_f32 v67, v66, v66")
        for j in range(1, 32):
            a(f"v_sub_f32 v66, v{32+j}, v64")
            a("v_fmac_f32 v67, v66, v66")
        red16(67, 65)
        a(f"v_mul_f32 v67, {f32hex(1/512)}, v67")
        bf16r(a, 64, 64)
        bf16r(a, 67, 67)
        a(f"v_add_f32 v67, {f32hex(1e-5)}, v67")
        bf16r(a, 67, 67)
        a("v_sqrt_f32 v67, v67")
        bf16r(a, 67, 67)
        a("v_rcp_f32 v68, v67")
        for d in range(16):
            for h in range(2):
                r = 32 + 2 * d + h
                a(f"v_sub_f32 v{r}, v{r}, v64")
            if not LN_EXACT:
                a(f"v_cvt_pk_bf16_f32 v69, v{32+2*d}, v{33+2*d}")
                a(f"v_lshlrev_b32 v{32+2*d}, 16, v69")
                a(f"v_and_b32 v{33+2*d}, 0xffff0000, v69")
            for h in range(2):
                r = 32 + 2 * d + h
                a(f"v_mul_f32 v70, v{r}, v68")
                a(f"v_fma_f32 v71, -v70, v67, v{r}")
                a(f"v_fma_f32 v{r}, v71, v68, v70")
            a(f"v_cvt_pk_bf16_f32 v{8+d}, v{32+2*d}, v{33+2*d}")
        for c in range(4):
            a(f"ds_write_b128 v7, v[{8+4*c}:{11+4*c}] offset:{256*c}")
    a("s_waitcnt lgkmcnt(0)")
    a("s_barrier")
    a("s_lshl_b32 s17, s15, 3")
    a("s_add_u32 s17, s17, s16")
    a("s_cmp_ge_u32 s17, 67")
    a("s_cbranch_scc1 K1_END")
    a("v_and_b32 v3, 31, v2")
    a("v_lshrrev_b32 v4, 5, v2")
    a("v_and_b32 v5, 15, v2")
    a("v_bfe_u32 v6, v2, 4, 1")
    a(f"v_mul_u32_u24 v10, {XN_STRIDE}, v3")
    a("v_lshl_add_u32 v10, v4, 4, v10")
    a("v_lshrrev_b32 v7, 2, v5")
    a("v_lshl_add_u32 v7, v4, 3, v7")
    a("v_lshlrev_b32 v7, 6, v7")
    a("v_and_b32 v8, 3, v5")
    a("v_lshlrev_b32 v8, 3, v8")
    a("v_lshl_add_u32 v8, v6, 5, v8")
    a("v_add_u32 v11, v7, v8")
    a(f"s_mul_i32 s18, s16, {K1_NST*2048}")
    a(f"s_add_u32 s18, s18, {K1_RING}")
    a("v_add_u32 v11, s18, v11")
    a("v_lshrrev_b32 v7, 2, v2")
    a("v_and_b32 v8, 3, v2")
    a("v_lshlrev_b32 v8, 4, v8")
    a("s_cmp_lt_u32 s17, 24")
    a("s_cbranch_scc0 K1_FFN")
    srd(a, 28, 6, 512 * 3072)
    srd(a, 32, 6, 512 * 3072)
    a("s_mov_b32 s36, 3072")
    a("s_lshl_b32 s37, s17, 7")
    a("s_add_u32 s38, s37, 64")
    a("s_branch K1_SEL")
    a.label("K1_FFN")
    srd(a, 28, 8, 512 * 2752)
    srd(a, 32, 10, 512 * 2752)
    a("s_mov_b32 s36, 2752")
    a("s_sub_u32 s37, s17, 24")
    a("s_lshl_b32 s37, s37, 6")
    a("s_mov_b32 s38, s37")
    a.label("K1_SEL")
    a("v_mul_lo_u32 v12, v7, s36")
    a("v_add_u32 v12, v12, v8")
    a("v_add_u32 v13, s38, v12")
    a("v_add_u32 v12, s37, v12")
    a("s_lshl_b32 s39, s36, 4")
    a("s_mov_b32 s40, 0")
    ACC = 64
    for r in range(64): a(f"v_mov_b32 v{ACC+r}, 0")
    def dma(stage):
        a(f"s_add_u32 m0, s18, {stage*2048}")
        a("buffer_load_dwordx4 v12, s[28:31], s40 offen lds")
        a(f"s_add_u32 m0, s18, {stage*2048+1024}")
        a("buffer_load_dwordx4 v13, s[32:35], s40 offen lds")
        a("s_add_u32 s40, s40, s39")
    def loop(tag, vorient):
        for st in range(K1_NST - 1): dma(st)
        XA = [16, 32]
        def reads(ks, base):
            st = ks % K1_NST
            for rt in range(2):
                a(f"ds_read_b128 v[{base+4*rt}:{base+4*rt+3}], v10 offset:{ks*32 + rt*32*XN_STRIDE}")
            for u in range(2):
                o = st * 2048 + u * 1024
                a(f"ds_read_b64_tr_b16 v[{base+8+4*u}:{base+9+4*u}], v11 offset:{o}")
                a(f"ds_read_b64_tr_b16 v[{base+10+4*u}:{base+11+4*u}], v11 offset:{o+256}")
        a(f"s_waitcnt vmcnt({2*(K1_NST-2)})")
        reads(0, XA[0])
        for ks in range(32):
            cur = XA[ks % 2]; nxt = XA[(ks + 1) % 2]
            a("s_waitcnt lgkmcnt(0)")
            if ks + K1_NST - 1 < 32:
                dma((ks + K1_NST - 1) % K1_NST)
            if ks + 1 < 32:
                outstanding = min(32, ks + K1_NST) - (ks + 2)
                a(f"s_waitcnt vmcnt({2*max(outstanding,0)})")
                reads(ks + 1, nxt)
            for rt in range(2):
                for u in range(2):
                    d = ACC + 16 * (2 * rt + u)
                    xa = f"v[{cur+4*rt}:{cur+4*rt+3}]"; wa = f"v[{cur+8+4*u}:{cur+11+4*u}]"
                    A, B = (xa, wa) if vorient else (wa, xa)
                    a(f"v_mfma_f32_32x32x16_bf16 v[{d}:{d+15}], {A}, {B}, v[{d}:{d+15}]")
    a("s_cmp_ge_u32 s17, 16")
    a("s_cselect_b32 s41, 1, 0")
    a("s_cmp_lt_u32 s17, 24")
    a("s_cselect_b32 s42, 1, 0")
    a("s_and_b32 s41, s41, s42")
    a("s_cmp_eq_u32 s41, 1")
    a("s_cbranch_scc1 K1_VLOOP")
    loop("T", False)
    a("s_cmp_ge_u32 s17, 24")
    a("s_cbranch_scc1 K1_EPI_H")
    a("s_lshr_b32 s43, s17, 3")
    a("s_lshl_b32 s43, s43, 21")
    a("s_and_b32 s44, s17, 7")
    a("s_lshl_b32 s44, s44, 18")
    a("s_add_u32 s43, s43, s44")
    a("s_lshl_b32 s44, s14, 11")
    a("s_add_u32 s43, s43, s44")
    a("v_lshlrev_b32 v14, 4, v2")
    a("v_add_u32 v14, s43, v14")
    for rt in range(2):
        for u in range(2):
            d = ACC + 16 * (2 * rt + u)
            for hh in range(2):
                for j in range(4):
                    a(f"v_cvt_pk_bf16_f32 v{16+j}, v{d+8*hh+2*j}, v{d+8*hh+2*j+1}")
                off = (2 * u + hh) * 65536 + rt * 1024
                a(f"s_mov_b32 s45, {off}")
                a("buffer_store_dwordx4 v[16:19], v14, s[24:27], s45 offen")
    a("s_branch K1_END")
    a.label("K1_EPI_H")
    a("s_sub_u32 s43, s17, 24")
    a("s_lshl_b32 s43, s43, 6")
    a(f"s_add_u32 s43, s43, {WS_H}")
    a("s_lshl_b32 s44, s14, 6")
    a("v_add_u32 v14, s44, v3")
    a("s_mov_b32 s45, 2752")
    a("v_mul_lo_u32 v14, v14, s45")
    a("v_lshl_add_u32 v14, v4, 3, v14")
    a("v_add_u32 v14, s43, v14")
    a(f"s_mov_b32 s46, {f32hex(-1.4426950408889634)}")
    for rt in range(2):
        dg = ACC + 16 * (2 * rt); du = dg + 16
        for q in range(4):
            for p in range(2):
                r0 = 4 * q + 2 * p
                a(f"v_cvt_pk_bf16_f32 v20, v{dg+r0}, v{dg+r0+1}")
                a(f"v_cvt_pk_bf16_f32 v21, v{du+r0}, v{du+r0+1}")
                a("v_lshlrev_b32 v22, 16, v20")
                a("v_and_b32 v23, 0xffff0000, v20")
                a("v_lshlrev_b32 v24, 16, v21")
                a("v_and_b32 v25, 0xffff0000, v21")
                for g in (22, 23):
                    a(f"v_mul_f32 v26, s46, v{g}")
                    a("v_exp_f32 v26, v26")
                    a("v_add_f32 v26, 1.0, v26")
                    a("v_rcp_f32 v26, v26")
                    a(f"v_mul_f32 v{g}, v{g}, v26")
                a("v_cvt_pk_bf16_f32 v20, v22, v23")
                a("v_lshlrev_b32 v22, 16, v20")
                a("v_and_b32 v23, 0xffff0000, v20")
                a("v_mul_f32 v22, v22, v24")
                a("v_mul_f32 v23, v23, v25")
                a(f"v_cvt_pk_bf16_f32 v{16+p}, v22, v23")
            a(f"s_mov_b32 s47, {rt*32*2752 + q*16}")
            a("buffer_store_dwordx2 v[16:17], v14, s[24:27], s47 offen")
    a("s_branch K1_END")
    a.label("K1_VLOOP")
    loop("V", True)
    a("s_sub_u32 s43, s17, 16")
    a("s_lshl_b32 s43, s43, 18")
    a(f"s_add_u32 s43, s43, {WS_V}")
    a("s_lshl_b32 s44, s14, 11")
    a("s_add_u32 s43, s43, s44")
    a("v_lshrrev_b32 v14, 4, v3")
    a("v_lshlrev_b32 v14, 16, v14")
    a("v_lshl_add_u32 v14, v4, 8, v14")
    a("v_lshl_add_u32 v14, v5, 4, v14")
    a("v_add_u32 v14, s43, v14")
    for rt in range(2):
        for u in range(2):
            d = ACC + 16 * (2 * rt + u)
            for g in range(2):
                for j in range(4):
                    a(f"v_cvt_pk_bf16_f32 v{16+j}, v{d+8*g+2*j}, v{d+8*g+2*j+1}")
                off = 2 * u * 65536 + rt * 1024 + g * 512
                a(f"s_mov_b32 s45, {off}")
                a("buffer_store_dwordx4 v[16:19], v14, s[24:27], s45 offen")
    a.label("K1_END")
    a("s_endpgm")
    return a.finalize(), 128, 64

def gen_k2():
    a = Asm()
    a("s_cmp_ge_u32 s2, 256")
    a("s_cbranch_scc1 K2_END")
    a("s_load_dwordx2 s[12:13], s[0:1], 72")
    a("s_lshr_b32 s14, s2, 3")
    a("s_and_b32 s15, s2, 7")
    a("v_lshrrev_b32 v1, 6, v0")
    a("v_readfirstlane_b32 s16, v1")
    a("v_and_b32 v2, 63, v0")
    a("s_waitcnt lgkmcnt(0)")
    srd(a, 24, 12, 0x10000000)
    a("v_lshlrev_b32 v3, 4, v2")
    a("s_lshl_b32 s17, s14, 16")
    a("s_lshl_b32 s18, s16, 13")
    a("s_add_u32 s19, s17, s18")
    a(f"s_add_u32 s20, s19, {WS_K}")
    a(f"s_add_u32 s21, s19, {WS_V}")
    for c in range(8):
        a(f"s_add_u32 m0, s18, {c*1024}")
        a("buffer_load_dwordx4 v3, s[24:27], s20 offen lds")
        a(f"s_add_u32 m0, s18, {65536 + c*1024}")
        a("buffer_load_dwordx4 v3, s[24:27], s21 offen lds")
        a("s_add_u32 s20, s20, 1024")
        a("s_add_u32 s21, s21, 1024")
    a("s_lshl_b32 s22, s15, 3")
    a("s_add_u32 s22, s22, s16")
    a("s_lshl_b32 s23, s22, 10")
    a("s_add_u32 s23, s23, s17")
    a(f"s_add_u32 s23, s23, {WS_Q}")
    a("buffer_load_dwordx4 v[8:11], v3, s[24:27], s23 offen")
    a("v_and_b32 v4, 31, v2")
    a("v_lshrrev_b32 v5, 5, v2")
    a("v_and_b32 v6, 15, v2")
    a("v_lshlrev_b32 v6, 4, v6")
    a("v_lshl_add_u32 v6, v5, 8, v6")
    a("v_add_u32 v6, 0x10000, v6")
    a("v_cmp_gt_u32 s[30:31], 16, v4")
    a("v_cmp_eq_u32 vcc, 16, v4")
    a("v_mov_b32 v7, 0x3f803f80")
    a("v_cndmask_b32 v7, 0, v7, vcc")
    VOP = [40, 48]
    for b in VOP:
        for r in range(8): a(f"v_mov_b32 v{b+r}, v7")
    a("s_waitcnt vmcnt(0)")
    a("s_barrier")
    S0, S1 = 64, 80
    KOP = [12, 16]
    a("v_mov_b32 v20, 0xff800000")
    a("v_mov_b32 v21, 0xff800000")
    a("s_mov_b32 s28, 0")
    a("v_mov_b32 v22, v3")
    a.label("K2_P1")
    for t in range(4):
        a(f"ds_read_b128 v[{KOP[t%2]}:{KOP[t%2]+3}], v22 offset:{t*1024}")
    for t in range(4):
        S = (S0, S1)[t % 2]
        if t < 2:
            a(f"s_waitcnt lgkmcnt({3 - 2*t if t==0 else 2})")
        a(f"v_mfma_f32_32x32x16_bf16 v[{S}:{S+15}], v[{KOP[t%2]}:{KOP[t%2]+3}], v[8:11], 0")
        if t == 1:
            pass
    a.lines = a.lines[:-(4 + 4 + 2)]
    for t in range(4):
        S = (S0, S1)[t % 2]; m = 20 + (t % 2)
        a(f"ds_read_b128 v[{KOP[t%2]}:{KOP[t%2]+3}], v22 offset:{t*1024}")
        a("s_waitcnt lgkmcnt(0)")
        a(f"v_mfma_f32_32x32x16_bf16 v[{S}:{S+15}], v[{KOP[t%2]}:{KOP[t%2]+3}], v[8:11], 0")
        for j in range(8):
            a(f"v_max3_f32 v{m}, v{m}, v{S+2*j}, v{S+2*j+1}")
    a("v_add_u32 v22, 4096, v22")
    a("s_add_u32 s28, s28, 4")
    a("s_cmp_lt_u32 s28, 64")
    a("s_cbranch_scc1 K2_P1")
    a("v_max_f32 v20, v20, v21")
    a("v_mov_b32 v21, v20")
    a("v_permlane32_swap_b32 v20, v21")
    a("v_max_f32 v20, v20, v21")
    if ROUND_SCORES:
        a("v_add_u32 v20, 0x8000, v20")
        a("v_and_b32 v20, 0xffff0000, v20")
    a(f"v_mov_b32 v23, {f32hex(C_SCALE)}")
    a("v_mul_f32 v24, v20, v23")
    a("v_sub_f32 v24, 0, v24")
    OACC = 96
    for r in range(16): a(f"v_mov_b32 v{OACC+r}, 0")
    a("s_mov_b32 s28, 0")
    a("v_mov_b32 v22, v3")
    a("v_mov_b32 v25, v6")
    a.label("K2_P2")
    for t in range(2):
        S = (S0, S1)[t]; K = KOP[t]; V = VOP[t]
        a(f"ds_read_b128 v[{K}:{K+3}], v22 offset:{t*1024}")
        a("s_mov_b64 exec, s[30:31]")
        a(f"ds_read_b128 v[{V}:{V+3}], v25 offset:{t*1024}")
        a(f"ds_read_b128 v[{V+4}:{V+7}], v25 offset:{t*1024+512}")
        a("s_mov_b64 exec, -1")
        a("s_waitcnt lgkmcnt(0)")
        a(f"v_mfma_f32_32x32x16_bf16 v[{S}:{S+15}], v[{K}:{K+3}], v[8:11], 0")
        for j in range(16):
            if ROUND_SCORES:
                a(f"v_add_u32 v{S+j}, 0x8000, v{S+j}")
                a(f"v_and_b32 v{S+j}, 0xffff0000, v{S+j}")
            a(f"v_fma_f32 v{S+j}, v{S+j}, v23, v24")
            a(f"v_exp_f32 v{S+j}, v{S+j}")
        for j in range(8):
            a(f"v_cvt_pk_bf16_f32 v{26+j}, v{S+2*j}, v{S+2*j+1}")
        a(f"v_mfma_f32_32x32x16_bf16 v[{OACC}:{OACC+15}], v[{V}:{V+3}], v[26:29], v[{OACC}:{OACC+15}]")
        a(f"v_mfma_f32_32x32x16_bf16 v[{OACC}:{OACC+15}], v[{V+4}:{V+7}], v[30:33], v[{OACC}:{OACC+15}]")
    a("v_add_u32 v22, 2048, v22")
    a("v_add_u32 v25, 2048, v25")
    a("s_add_u32 s28, s28, 2")
    a("s_cmp_lt_u32 s28, 64")
    a("s_cbranch_scc1 K2_P2")
    a(f"v_mov_b32 v20, v{OACC+8}")
    a(f"v_mov_b32 v21, v{OACC+8}")
    a("v_permlane32_swap_b32 v20, v21")
    a("v_rcp_f32 v21, v20")
    for r in range(8):
        a(f"v_mul_f32 v26, v{OACC+r}, v21")
        a(f"v_fma_f32 v27, -v26, v20, v{OACC+r}")
        a(f"v_fma_f32 v{OACC+r}, v27, v21, v26")
    for j in range(4):
        a(f"v_cvt_pk_bf16_f32 v{26+j}, v{OACC+2*j}, v{OACC+2*j+1}")
    a("s_lshl_b32 s23, s22, 15")
    a("s_lshl_b32 s29, s14, 5")
    a("s_add_u32 s23, s23, s29")
    a(f"s_add_u32 s23, s23, {WS_O}")
    a("v_lshlrev_b32 v22, 10, v4")
    a("v_lshl_add_u32 v22, v5, 3, v22")
    a("buffer_store_dwordx2 v[26:27], v22, s[24:27], s23 offen")
    a("buffer_store_dwordx2 v[28:29], v22, s[24:27], s23 offen offset:16")
    a.label("K2_END")
    a("s_endpgm")
    return a.finalize(), 112, 64

K3_NST = 4
K3_LDS = 4 * K3_NST * 2048
def gen_k3():
    a = Asm()
    a("s_cmp_ge_u32 s2, 128")
    a("s_cbranch_scc1 K3_END")
    a("s_load_dwordx2 s[4:5], s[0:1], 0")
    a("s_load_dwordx2 s[6:7], s[0:1], 16")
    a("s_load_dwordx4 s[8:11], s[0:1], 48")
    a("s_load_dwordx2 s[12:13], s[0:1], 72")
    a("v_lshrrev_b32 v1, 6, v0")
    a("v_readfirstlane_b32 s16, v1")
    a("v_and_b32 v2, 63, v0")
    a("s_lshl_b32 s14, s2, 2")
    a("s_add_u32 s14, s14, s16")
    a("s_lshr_b32 s15, s14, 3")
    a("s_and_b32 s17, s14, 7")
    a("s_waitcnt lgkmcnt(0)")
    srd(a, 20, 4, 2048 * 1024)
    srd(a, 24, 10, 2048 * 1024)
    srd(a, 28, 6, 512 * 1024)
    srd(a, 32, 8, 1376 * 1024)
    srd(a, 36, 12, 2048 * 1024, WS_O)
    srd(a, 40, 12, H_BYTES, WS_H)
    a("v_and_b32 v3, 31, v2")
    a("v_lshrrev_b32 v4, 5, v2")
    a("v_and_b32 v5, 15, v2")
    a("v_bfe_u32 v6, v2, 4, 1")
    a("s_lshl_b32 s18, s15, 5")
    a("v_add_u32 v9, s18, v3")
    a("v_lshlrev_b32 v10, 10, v9")
    a("v_lshl_add_u32 v10, v4, 4, v10")
    a("s_mov_b32 s19, 2752")
    a("v_mul_lo_u32 v14, v9, s19")
    a("v_lshl_add_u32 v14, v4, 4, v14")
    a("v_lshrrev_b32 v7, 2, v5")
    a("v_lshl_add_u32 v7, v4, 3, v7")
    a("v_lshlrev_b32 v7, 6, v7")
    a("v_and_b32 v8, 3, v5")
    a("v_lshlrev_b32 v8, 3, v8")
    a("v_lshl_add_u32 v8, v6, 5, v8")
    a("v_add_u32 v11, v7, v8")
    a(f"s_mul_i32 s18, s16, {K3_NST*2048}")
    a("v_add_u32 v11, s18, v11")
    a("v_lshrrev_b32 v7, 2, v2")
    a("v_and_b32 v8, 3, v2")
    a("v_lshlrev_b32 v8, 4, v8")
    a("v_lshl_add_u32 v12, v7, 10, v8")
    a("s_lshl_b32 s19, s17, 7")
    a("v_add_u32 v12, s19, v12")
    a("v_add_u32 v13, 64, v12")
    ACC = 64
    for r in range(32): a(f"v_mov_b32 v{ACC+r}, 0")
    def phase(tag, wsrd, asrd, avoff, nsteps):
        a("s_mov_b32 s44, 0")
        a("s_mov_b32 s45, 0")
        a("s_mov_b32 s46, 0")
        def issue(st):
            a(f"s_add_u32 m0, s18, {st*2048}")
            a(f"buffer_load_dwordx4 v12, s[{wsrd}:{wsrd+3}], s44 offen lds")
            a(f"s_add_u32 m0, s18, {st*2048+1024}")
            a(f"buffer_load_dwordx4 v13, s[{wsrd}:{wsrd+3}], s44 offen lds")
            a(f"buffer_load_dwordx4 v[{16+4*st}:{19+4*st}], v{avoff}, s[{asrd}:{asrd+3}], s45 offen")
            a("s_add_u32 s44, s44, 16384")
            a("s_add_u32 s45, s45, 32")
        for st in range(K3_NST - 1): issue(st)
        a.label(f"K3_L{tag}")
        for st in range(K3_NST):
            issue((st + K3_NST - 1) % K3_NST)
            a(f"s_waitcnt vmcnt({3*(K3_NST-1)})")
            for u in range(2):
                o = st * 2048 + u * 1024
                a(f"ds_read_b64_tr_b16 v[{40+4*u}:{41+4*u}], v11 offset:{o}")
                a(f"ds_read_b64_tr_b16 v[{42+4*u}:{43+4*u}], v11 offset:{o+256}")
            a("s_waitcnt lgkmcnt(0)")
            for u in range(2):
                d = ACC + 16 * u
                a(f"v_mfma_f32_32x32x16_bf16 v[{d}:{d+15}], v[{40+4*u}:{43+4*u}], v[{16+4*st}:{19+4*st}], v[{d}:{d+15}]")
        a(f"s_add_u32 s46, s46, {K3_NST}")
        a(f"s_cmp_lt_u32 s46, {nsteps}")
        a(f"s_cbranch_scc1 K3_L{tag}")
        a("s_waitcnt vmcnt(0)")
    phase("O", 28, 36, 10, 32)
    phase("H", 32, 40, 14, 88)
    a("v_lshlrev_b32 v10, 10, v9")
    a("v_lshl_add_u32 v10, v4, 3, v10")
    a("v_add_u32 v10, s19, v10")
    for u in range(2):
        for q in range(4):
            a(f"buffer_load_dwordx2 v[{16+2*(4*u+q)}:{17+2*(4*u+q)}], v10, s[20:23], 0 offen offset:{u*64+q*16}")
    a("s_waitcnt vmcnt(0)")
    for u in range(2):
        for q in range(4):
            xr = 16 + 2 * (4 * u + q); d = ACC + 16 * u + 4 * q
            for p in range(2):
                a(f"v_lshlrev_b32 v40, 16, v{xr+p}")
                a(f"v_and_b32 v41, 0xffff0000, v{xr+p}")
                a(f"v_add_f32 v40, v40, v{d+2*p}")
                a(f"v_add_f32 v41, v41, v{d+2*p+1}")
                a(f"v_cvt_pk_bf16_f32 v{xr+p}, v40, v41")
            a(f"buffer_store_dwordx2 v[{xr}:{xr+1}], v10, s[24:27], 0 offen offset:{u*64+q*16}")
    a.label("K3_END")
    a("s_endpgm")
    return a.finalize(), 96, 64

def desc(name, nv, ns):
    return f""".amdhsa_kernel {name}
  .amdhsa_next_free_vgpr {nv}
  .amdhsa_next_free_sgpr {ns}
  .amdhsa_accum_offset {nv}
  .amdhsa_group_segment_fixed_size 0
  .amdhsa_kernarg_size 80
  .amdhsa_user_sgpr_count 2
  .amdhsa_user_sgpr_kernarg_segment_ptr 1
  .amdhsa_system_sgpr_workgroup_id_x 1
.end_amdhsa_kernel"""

def build(path):
    ks = [("k1_kernel", gen_k1(), 288, 512, K1_LDS), ("k2_kernel", gen_k2(), 256, 512, 131072), ("k3_kernel", gen_k3(), 128, 256, K3_LDS)]
    out = []
    for n, _, g, b, l in ks:
        out.append(f"; @launch kernel={n} grid=({g},1,1) block=({b},1,1) lds={l}")
    out += ['.amdgcn_target "amdgcn-amd-amdhsa--gfx950"', ".text"]
    for n, (txt, nv, ns), *_ in ks:
        out += [f".globl {n}", ".p2align 8", f".type {n},@function", f"{n}:", txt]
    out.append('.section .rodata,"a"')
    for n, (txt, nv, ns), *_ in ks:
        out += [".p2align 6", desc(n, nv, ns)]
    open(path, "w").write("\n".join(out) + "\n")

if __name__ == "__main__":
    if "noround" in sys.argv: ROUND_SCORES = False
    if "lnexact" in sys.argv: LN_EXACT = True
    p = sys.argv[1]
    build(p)
```

```python
import sys, struct
sys.path.insert(0, "work")
from asmgen import Asm

WS_Q = 0
WS_K = 2 << 20
WS_V = 4 << 20
WS_H = 6 << 20
WS_O = 12 << 20
WS_P = 16 << 20
H_BYTES = 64 * 86 * 1024
C_SCALE = 0.25 * 1.4426950408889634
STAMP = False
_uid = 0

def f32hex(x): return "0x%08x" % struct.unpack("<I", struct.pack("<f", x))[0]

def srd(a, d, ptr_lo, nbytes, off=0):
    if off:
        a(f"s_add_u32 s{d}, s{ptr_lo}, {off}")
        a(f"s_addc_u32 s{d+1}, s{ptr_lo+1}, 0")
        a(f"s_and_b32 s{d+1}, s{d+1}, 0xffff")
    else:
        a(f"s_mov_b32 s{d}, s{ptr_lo}")
        a(f"s_and_b32 s{d+1}, s{ptr_lo+1}, 0xffff")
    a(f"s_mov_b32 s{d+2}, {nbytes}")
    a(f"s_mov_b32 s{d+3}, 0x20000")

def bf16r(a, dst, src):
    a(f"v_cvt_pk_bf16_f32 v{dst}, v{src}, v{src}")
    a(f"v_lshlrev_b32 v{dst}, 16, v{dst}")

def stamp(a, i):
    if not STAMP: return
    a("s_memtime s[90:91]")
    a("s_waitcnt lgkmcnt(0)")
    a(f"s_mov_b32 s{70+i}, s90")

def dbg_srd(a):
    a("s_load_dwordx2 s[92:93], s[0:1], 64")
    a("s_waitcnt lgkmcnt(0)")
    a("s_mov_b32 s96, s92")
    a("s_and_b32 s97, s93, 0xffff")
    a("s_mov_b32 s98, 256")
    a("s_mov_b32 s99, 0x20000")

WS_DBG = 40 << 20
def rt_start(a):
    if not STAMP: return
    dbg_srd(a)
    a("s_memrealtime s[90:91]")
    a("s_waitcnt lgkmcnt(0)")
    a("s_mov_b32 s88, s90")

def rt_end(a, n, wave_sreg=16, wg=0, wave=0, base=0, kidx=0):
    if not STAMP: return
    global _uid
    a("s_waitcnt vmcnt(0) lgkmcnt(0)")
    stamp(a, n - 1)
    a("s_memrealtime s[90:91]")
    a("s_waitcnt lgkmcnt(0)")
    a("v_and_b32 v2, 63, v0")
    a("v_cmp_eq_u32 vcc, 0, v2")
    a("s_and_saveexec_b64 s[94:95], vcc")
    a("s_lshl_b32 s89, s2, 4")
    a(f"s_add_u32 s89, s89, s{wave_sreg}")
    a("s_lshl_b32 s89, s89, 3")
    a(f"s_add_u32 s89, s89, {WS_DBG + kidx*65536}")
    a("v_mov_b32 v4, s88")
    a("v_mov_b32 v5, s90")
    a("buffer_store_dwordx2 v[4:5], v2, s[24:27], s89 offen")
    _uid += 1
    lab = f"STF_{_uid}"
    a(f"s_cmp_lg_u32 s2, {wg}")
    a(f"s_cbranch_scc1 {lab}")
    a(f"s_cmp_lg_u32 s{wave_sreg}, {wave}")
    a(f"s_cbranch_scc1 {lab}")
    for i in range(1, n):
        a(f"s_sub_u32 s90, s{70+i}, s70")
        a("v_mov_b32 v1, s90")
        a(f"buffer_store_dword v1, v2, s[96:99], 0 offen offset:{4*(base+i)}")
    a.label(lab)
    a("s_waitcnt vmcnt(0)")

def tr_addr(a, dst, t0, t1, lane=2):
    a(f"v_and_b32 v{t0}, 15, v{lane}")
    a(f"v_lshrrev_b32 v{dst}, 2, v{t0}")
    a(f"v_lshrrev_b32 v{t1}, 5, v{lane}")
    a(f"v_lshl_add_u32 v{dst}, v{t1}, 3, v{dst}")
    a(f"v_lshlrev_b32 v{dst}, 6, v{dst}")
    a(f"v_and_b32 v{t0}, 3, v{t0}")
    a(f"v_lshlrev_b32 v{t0}, 3, v{t0}")
    a(f"v_bfe_u32 v{t1}, v{lane}, 4, 1")
    a(f"v_lshl_add_u32 v{t0}, v{t1}, 5, v{t0}")
    a(f"v_add_u32 v{dst}, v{dst}, v{t0}")

def perm_row(a, dst, t0, t1, lane=2):
    a(f"v_lshrrev_b32 v{t0}, 2, v{lane}")
    a(f"v_and_b32 v{dst}, 3, v{t0}")
    a(f"v_bfe_u32 v{t1}, v{t0}, 3, 1")
    a(f"v_lshl_add_u32 v{dst}, v{t1}, 2, v{dst}")
    a(f"v_bfe_u32 v{t1}, v{t0}, 2, 1")
    a(f"v_lshl_add_u32 v{dst}, v{t1}, 3, v{dst}")

WS_XN = 32 << 20
def gen_k0():
    a = Asm()
    a("s_cmp_ge_u32 s2, 128")
    a("s_cbranch_scc1 K0_END")
    rt_start(a)
    stamp(a, 0)
    a("s_load_dwordx2 s[4:5], s[0:1], 0")
    a("s_load_dwordx2 s[12:13], s[0:1], 72")
    a("v_lshrrev_b32 v1, 6, v0")
    a("v_readfirstlane_b32 s16, v1")
    a("v_and_b32 v2, 63, v0")
    a("s_waitcnt lgkmcnt(0)")
    srd(a, 20, 4, 2048 * 1024)
    srd(a, 24, 12, 0x10000000)
    a("v_lshrrev_b32 v3, 4, v2")
    a("v_and_b32 v4, 15, v2")
    a("s_lshl_b32 s17, s2, 4")
    a("s_lshl_b32 s18, s16, 2")
    a("s_add_u32 s17, s17, s18")
    a("v_add_u32 v5, s17, v3")
    a("v_lshlrev_b32 v6, 10, v5")
    a("v_lshl_add_u32 v6, v4, 4, v6")
    X = 8; U = 32
    for c in range(4):
        a(f"buffer_load_dwordx4 v[{X+4*c}:{X+4*c+3}], v6, s[20:23], 0 offen offset:{256*c}")
    a("v_lshrrev_b32 v7, 5, v5")
    a("v_lshlrev_b32 v7, 15, v7")
    a("v_lshrrev_b32 v66, 1, v4")
    a("v_lshl_add_u32 v7, v66, 10, v7")
    a("v_and_b32 v66, 1, v4")
    a("v_lshl_add_u32 v7, v66, 9, v7")
    a("v_and_b32 v66, 31, v5")
    a("v_lshl_add_u32 v7, v66, 4, v7")
    a("s_waitcnt vmcnt(0)")
    def red16(r, t):
        for ctl in ("quad_perm:[1,0,3,2]", "quad_perm:[2,3,0,1]", "row_half_mirror", "row_mirror"):
            a(f"v_add_f32_dpp v{t}, v{r}, v{r} {ctl} row_mask:0xf bank_mask:0xf")
            a(f"v_mov_b32 v{r}, v{t}")
    for d in range(16):
        a(f"v_lshlrev_b32 v{U+2*d}, 16, v{X+d}")
        a(f"v_and_b32 v{U+2*d+1}, 0xffff0000, v{X+d}")
    a(f"v_add_f32 v67, v{U}, v{U+1}")
    a(f"v_add_f32 v68, v{U+2}, v{U+3}")
    for j in range(4, 32, 2):
        a(f"v_add_f32 v67, v67, v{U+j}")
        a(f"v_add_f32 v68, v68, v{U+j+1}")
    a("v_add_f32 v67, v67, v68")
    red16(67, 68)
    a(f"v_mul_f32 v67, {f32hex(1/512)}, v67")
    a(f"v_sub_f32 v69, v{U}, v67")
    a("v_mul_f32 v70, v69, v69")
    a(f"v_sub_f32 v71, v{U+1}, v67")
    a("v_mul_f32 v72, v71, v71")
    for j in range(2, 32, 2):
        a(f"v_sub_f32 v69, v{U+j}, v67")
        a("v_fmac_f32 v70, v69, v69")
        a(f"v_sub_f32 v71, v{U+j+1}, v67")
        a("v_fmac_f32 v72, v71, v71")
    a("v_add_f32 v70, v70, v72")
    red16(70, 68)
    a(f"v_mul_f32 v70, {f32hex(1/512)}, v70")
    bf16r(a, 67, 67)
    bf16r(a, 70, 70)
    a(f"v_add_f32 v70, {f32hex(1e-5)}, v70")
    bf16r(a, 70, 70)
    a("v_sqrt_f32 v70, v70")
    bf16r(a, 70, 70)
    a("v_rcp_f32 v71, v70")
    for d in range(16):
        for h in range(2):
            r = U + 2 * d + h
            a(f"v_sub_f32 v{r}, v{r}, v67")
        a(f"v_cvt_pk_bf16_f32 v72, v{U+2*d}, v{U+2*d+1}")
        a(f"v_lshlrev_b32 v{U+2*d}, 16, v72")
        a(f"v_and_b32 v{U+2*d+1}, 0xffff0000, v72")
        for h in range(2):
            r = U + 2 * d + h
            a(f"v_mul_f32 v73, v{r}, v71")
            a(f"v_fma_f32 v74, -v73, v70, v{r}")
            a(f"v_fma_f32 v{r}, v74, v71, v73")
        a(f"v_cvt_pk_bf16_f32 v{X+d}, v{U+2*d}, v{U+2*d+1}")
    for c in range(4):
        a(f"s_mov_b32 s19, {WS_XN + 8192*c}")
        a(f"buffer_store_dwordx4 v[{X+4*c}:{X+4*c+3}], v7, s[24:27], s19 offen")
    rt_end(a, 2, wg=0, wave=0, kidx=3)
    a.label("K0_END")
    a("s_endpgm")
    return a.finalize(), 80, 102

K1_NS = 8
K1_SS = 14336
K1_LDS = K1_NS * K1_SS

def gen_k1():
    a = Asm()
    a("s_cmp_ge_u32 s2, 256")
    a("s_cbranch_scc1 K1_END")
    rt_start(a)
    stamp(a, 0)
    a("s_load_dwordx2 s[6:7], s[0:1], 8")
    a("s_load_dwordx4 s[8:11], s[0:1], 32")
    a("s_load_dwordx2 s[12:13], s[0:1], 72")
    a("s_lshr_b32 s14, s2, 4")
    a("s_and_b32 s15, s2, 7")
    a("s_lshl_b32 s15, s15, 1")
    a("s_bfe_u32 s17, s2, 0x10003")
    a("s_add_u32 s15, s15, s17")
    a("v_lshrrev_b32 v1, 6, v0")
    a("v_readfirstlane_b32 s16, v1")
    a("v_and_b32 v2, 63, v0")
    a("s_waitcnt lgkmcnt(0)")
    srd(a, 24, 12, 0x10000000)
    srd(a, 48, 8, 512 * 2752)
    srd(a, 52, 10, 512 * 2752)
    a("v_lshlrev_b32 v6, 4, v2")
    a("v_and_b32 v3, 31, v2")
    a("v_lshrrev_b32 v4, 5, v2")
    a("v_and_b32 v5, 15, v2")
    a(f"s_mov_b32 s46, {f32hex(-1.4426950408889634)}")
    ACC = 64; XA = [16, 32]
    a("s_cmp_eq_u32 s16, 8")
    a("s_cbranch_scc1 K1_MINI")
    a("s_lshr_b32 s19, s16, 2")
    a("s_and_b32 s21, s16, 3")
    a("s_cmp_lt_u32 s15, 6")
    a("s_cbranch_scc0 K1_FFN")
    srd(a, 28, 6, 512 * 3072)
    a("s_mov_b32 s36, 3072")
    a("s_lshl_b32 s37, s15, 9")
    a("s_lshl_b32 s38, s19, 8")
    a("s_add_u32 s37, s37, s38")
    a("s_branch K1_SEL")
    a.label("K1_FFN")
    a("s_cmp_eq_u32 s19, 0")
    a("s_cselect_b32 s28, s48, s52")
    a("s_cselect_b32 s29, s49, s53")
    a(f"s_mov_b32 s30, {512*2752}")
    a("s_mov_b32 s31, 0x20000")
    a("s_mov_b32 s36, 2752")
    a("s_sub_u32 s37, s15, 6")
    a("s_lshl_b32 s37, s37, 8")
    a.label("K1_SEL")
    a("v_lshrrev_b32 v7, 4, v2")
    a("v_bfe_u32 v8, v2, 2, 2")
    a("v_xor_b32 v8, v8, v7")
    a("v_lshlrev_b32 v8, 6, v8")
    a("v_and_b32 v9, 3, v2")
    a("v_lshl_add_u32 v8, v9, 4, v8")
    a("s_lshl_b32 s38, s21, 2")
    a("v_add_u32 v7, s38, v7")
    a("v_mul_lo_u32 v12, v7, s36")
    a("v_add_u32 v12, v12, v8")
    a("v_add_u32 v12, s37, v12")
    a("s_lshl_b32 s39, s36, 4")
    a("s_lshl_b32 s18, s16, 10")
    a("s_lshl_b32 s41, s14, 2")
    a("s_add_u32 s41, s41, s21")
    a("s_lshl_b32 s41, s41, 15")
    a("s_lshl_b32 s42, s19, 10")
    a("s_add_u32 s41, s41, s42")
    a(f"s_add_u32 s41, s41, {WS_XN}")
    a("s_lshl_b32 s43, s21, 10")
    a("s_add_u32 s43, s43, 8192")
    a("s_mov_b32 s40, 0")
    def issue(st):
        a(f"s_add_u32 m0, s18, {st*K1_SS}")
        a("buffer_load_dwordx4 v12, s[28:31], s40 offen lds")
        a("s_add_u32 s40, s40, s39")
        if st % 2 == 0:
            a(f"s_mul_i32 s44, s19, {K1_SS}")
            a("s_add_u32 s44, s44, s43")
            a(f"s_add_u32 m0, s44, {st*K1_SS}")
            a("buffer_load_dwordx4 v6, s[24:27], s41 offen lds")
            a("s_add_u32 s41, s41, 2048")
    for st in range(K1_NS - 2): issue(st)
    a("s_lshl_b32 s45, s19, 11")
    a("s_add_u32 s45, s45, 8192")
    a("v_add_u32 v10, s45, v6")
    a("v_lshrrev_b32 v7, 2, v5")
    a("v_lshl_add_u32 v11, v4, 3, v7")
    a("v_lshlrev_b32 v11, 8, v11")
    a("v_xor_b32 v7, s21, v7")
    a("v_lshl_add_u32 v11, v7, 6, v11")
    a("v_and_b32 v7, 3, v5")
    a("v_lshl_add_u32 v11, v7, 3, v11")
    a("v_bfe_u32 v7, v2, 4, 1")
    a("v_lshl_add_u32 v11, v7, 5, v11")
    a(f"v_add_u32 v13, {4*K1_SS}, v10")
    a(f"v_add_u32 v14, {4*K1_SS}, v11")
    for r in range(64): a(f"v_mov_b32 v{ACC+r}, 0")
    a(f"s_waitcnt vmcnt({3*(K1_NS-2)//2 - 3})")
    a("s_barrier")
    stamp(a, 1)

    def loop(tag, vorient):
        def reads(st, base):
            ra, rw = (10, 11) if st < 4 else (13, 14)
            so = (st % 4) * K1_SS
            for rt in range(2):
                a(f"ds_read_b128 v[{base+4*rt}:{base+4*rt+3}], v{ra} offset:{so + rt*1024}")
            for u in range(2):
                o = so + u * 4096
                a(f"ds_read_b64_tr_b16 v[{base+8+4*u}:{base+9+4*u}], v{rw} offset:{o}")
                a(f"ds_read_b64_tr_b16 v[{base+10+4*u}:{base+11+4*u}], v{rw} offset:{o+1024}")
        reads(0, XA[0])
        a("s_mov_b32 s47, 0")
        a.label(f"K1_L{tag}")
        for s in range(K1_NS):
            cur = XA[s % 2]; nxt = XA[(s + 1) % 2]
            if s % 2 == 1:
                a("s_waitcnt lgkmcnt(0)")
                a(f"s_waitcnt vmcnt({3*(K1_NS-2)//2 - 6})")
                a("s_barrier")
                issue((s + K1_NS - 3) % K1_NS)
                issue((s + K1_NS - 2) % K1_NS)
            else:
                a("s_waitcnt lgkmcnt(0)")
            reads((s + 1) % K1_NS, nxt)
            for rt in range(2):
                for u in range(2):
                    d = ACC + 16 * (2 * rt + u)
                    xa = f"v[{cur+4*rt}:{cur+4*rt+3}]"; wa = f"v[{cur+8+4*u}:{cur+11+4*u}]"
                    A, B = (xa, wa) if vorient else (wa, xa)
                    a(f"v_mfma_f32_32x32x16_bf16 v[{d}:{d+15}], {A}, {B}, v[{d}:{d+15}]")
        a("s_add_u32 s47, s47, 1")
        a(f"s_cmp_lt_u32 s47, {32//K1_NS}")
        a(f"s_cbranch_scc1 K1_L{tag}")

    def h_epi(dg, du, soff):
        for ks in range(2):
            for p in range(4):
                r0 = 8 * ks + 2 * p
                a(f"v_cvt_pk_bf16_f32 v20, v{dg+r0}, v{dg+r0+1}")
                a(f"v_cvt_pk_bf16_f32 v21, v{du+r0}, v{du+r0+1}")
                a("v_lshlrev_b32 v22, 16, v20")
                a("v_and_b32 v23, 0xffff0000, v20")
                a("v_lshlrev_b32 v24, 16, v21")
                a("v_and_b32 v25, 0xffff0000, v21")
                for g in (22, 23):
                    a(f"v_mul_f32 v26, s46, v{g}")
                    a("v_exp_f32 v26, v26")
                    a("v_add_f32 v26, 1.0, v26")
                    a("v_rcp_f32 v26, v26")
                    a(f"v_mul_f32 v{g}, v{g}, v26")
                a("v_cvt_pk_bf16_f32 v20, v22, v23")
                a("v_lshlrev_b32 v22, 16, v20")
                a("v_and_b32 v23, 0xffff0000, v20")
                a("v_mul_f32 v22, v22, v24")
                a("v_mul_f32 v23, v23, v25")
                a(f"v_cvt_pk_bf16_f32 v{16+p}, v22, v23")
            a(f"s_mov_b32 s47, {soff + ks*1024}")
            a("buffer_store_dwordx4 v[16:19], v9, s[24:27], s47 offen")

    def h_addr():
        a(f"s_mul_i32 s45, s45, {86*1024}")
        a("s_lshl_b32 s43, s43, 11")
        a("s_add_u32 s43, s43, s45")
        a(f"s_add_u32 s43, s43, {WS_H}")
        a("v_add_u32 v9, s43, v6")

    a("s_lshl_b32 s42, s14, 2")
    a("s_lshl_b32 s43, s19, 1")
    a("s_add_u32 s42, s42, s43")
    a("s_cmp_ge_u32 s15, 4")
    a("s_cselect_b32 s58, 1, 0")
    a("s_cmp_lt_u32 s15, 6")
    a("s_cselect_b32 s59, 1, 0")
    a("s_and_b32 s58, s58, s59")
    a("s_lshl_b32 s43, s21, 10")
    a("s_add_u32 s43, s43, 8192")
    a("s_cmp_eq_u32 s58, 1")
    a("s_cbranch_scc1 K1_VLOOP")
    loop("T", False)
    stamp(a, 2)
    a("s_cmp_ge_u32 s15, 6")
    a("s_cbranch_scc1 K1_EPI_H")
    a("s_lshr_b32 s43, s15, 1")
    a("s_lshl_b32 s43, s43, 21")
    a("s_and_b32 s44, s15, 1")
    a("s_lshl_b32 s44, s44, 20")
    a("s_add_u32 s43, s43, s44")
    a("s_lshl_b32 s44, s21, 17")
    a("s_add_u32 s43, s43, s44")
    a("s_lshl_b32 s44, s42, 10")
    a("s_add_u32 s43, s43, s44")
    a("v_add_u32 v9, s43, v6")
    a("s_cmp_lt_u32 s15, 2")
    a(f"s_cselect_b32 s44, {f32hex(C_SCALE)}, 1.0")
    a("v_mov_b32 v28, s44")
    for rt in range(2):
        for u in range(2):
            d = ACC + 16 * (2 * rt + u)
            for hh in range(2):
                for j in range(8):
                    a(f"v_mul_f32 v{d+8*hh+j}, v{d+8*hh+j}, v28")
                for j in range(4):
                    a(f"v_cvt_pk_bf16_f32 v{16+j}, v{d+8*hh+2*j}, v{d+8*hh+2*j+1}")
                a(f"s_mov_b32 s45, {(8 * u + hh) * 65536 + rt * 1024}")
                a("buffer_store_dwordx4 v[16:19], v9, s[24:27], s45 offen")
    a("s_branch K1_FIN")
    a.label("K1_EPI_H")
    a("s_sub_u32 s43, s15, 6")
    a("s_lshl_b32 s43, s43, 2")
    a("s_add_u32 s43, s43, s21")
    a("s_mov_b32 s45, s42")
    h_addr()
    for rt in range(2):
        h_epi(ACC + 32 * rt, ACC + 32 * rt + 16, rt * 86 * 1024)
    a("s_branch K1_FIN")
    a.label("K1_VLOOP")
    loop("V", True)
    a("s_and_b32 s43, s15, 1")
    a("s_lshl_b32 s43, s43, 20")
    a("s_lshl_b32 s44, s21, 17")
    a("s_add_u32 s43, s43, s44")
    a(f"s_add_u32 s43, s43, {WS_V}")
    a("s_lshl_b32 s44, s42, 10")
    a("s_add_u32 s43, s43, s44")
    a("v_lshrrev_b32 v9, 4, v3")
    a("v_lshlrev_b32 v9, 16, v9")
    a("v_lshl_add_u32 v9, v4, 8, v9")
    a("v_lshl_add_u32 v9, v5, 4, v9")
    a("v_add_u32 v9, s43, v9")
    for rt in range(2):
        for u in range(2):
            d = ACC + 16 * (2 * rt + u)
            for g in range(2):
                for j in range(4):
                    a(f"v_cvt_pk_bf16_f32 v{16+j}, v{d+8*g+2*j}, v{d+8*g+2*j+1}")
                a(f"s_mov_b32 s45, {8 * u * 65536 + rt * 1024 + g * 512}")
                a("buffer_store_dwordx4 v[16:19], v9, s[24:27], s45 offen")
    a("s_branch K1_FIN")
    a.label("K1_MINI")
    a("s_lshr_b32 s62, s15, 2")
    a("s_add_u32 s62, s62, 40")
    a("s_and_b32 s63, s15, 3")
    a("s_cmp_ge_u32 s15, 12")
    a("s_cselect_b32 s50, 0, s50")
    a(f"s_cselect_b32 s54, 0, {512*2752}")
    a("s_cselect_b32 s50, 0, s54")
    a("v_lshrrev_b32 v7, 2, v2")
    a("s_mov_b32 s56, 2752")
    a("v_mul_lo_u32 v15, v7, s56")
    a("v_and_b32 v8, 3, v2")
    a("v_lshl_add_u32 v15, v8, 4, v15")
    a("s_lshl_b32 s57, s62, 6")
    a("v_add_u32 v15, s57, v15")
    a("s_mov_b32 s40, 0")
    def missue(st):
        a(f"s_mov_b32 m0, {st*K1_SS + 12288}")
        a("buffer_load_dwordx4 v15, s[48:51], s40 offen lds")
        a(f"s_mov_b32 m0, {st*K1_SS + 13312}")
        a("buffer_load_dwordx4 v15, s[52:55], s40 offen lds")
        a(f"s_add_u32 s40, s40, {2752*16}")
    for st in range(K1_NS - 2): missue(st)
    tr_addr(a, 11, 7, 8)
    a("v_add_u32 v11, 12288, v11")
    a("s_lshl_b32 s45, s63, 10")
    a("s_add_u32 s45, s45, 8192")
    a("v_add_u32 v10, s45, v6")
    a(f"v_add_u32 v13, {4*K1_SS}, v10")
    a(f"v_add_u32 v14, {4*K1_SS}, v11")
    for r in range(32): a(f"v_mov_b32 v{ACC+r}, 0")
    a(f"s_waitcnt vmcnt({2*(K1_NS-2) - 4})")
    a("s_barrier")
    def mreads(st, base):
        ra, rw = (10, 11) if st < 4 else (13, 14)
        so = (st % 4) * K1_SS
        a(f"ds_read_b128 v[{base}:{base+3}], v{ra} offset:{so}")
        for u in range(2):
            a(f"ds_read_b64_tr_b16 v[{base+8+4*u}:{base+9+4*u}], v{rw} offset:{so + u*1024}")
            a(f"ds_read_b64_tr_b16 v[{base+10+4*u}:{base+11+4*u}], v{rw} offset:{so + u*1024+256}")
    mreads(0, XA[0])
    a("s_mov_b32 s47, 0")
    a.label("K1_ML")
    for s in range(K1_NS):
        cur = XA[s % 2]; nxt = XA[(s + 1) % 2]
        a("s_waitcnt lgkmcnt(0)")
        if s % 2 == 1:
            a(f"s_waitcnt vmcnt({2*(K1_NS-2) - 8})")
            a("s_barrier")
            missue((s + K1_NS - 3) % K1_NS)
            missue((s + K1_NS - 2) % K1_NS)
        mreads((s + 1) % K1_NS, nxt)
        for u in range(2):
            d = ACC + 16 * u
            a(f"v_mfma_f32_32x32x16_bf16 v[{d}:{d+15}], v[{cur+8+4*u}:{cur+11+4*u}], v[{cur}:{cur+3}], v[{d}:{d+15}]")
    a("s_add_u32 s47, s47, 1")
    a(f"s_cmp_lt_u32 s47, {32//K1_NS}")
    a("s_cbranch_scc1 K1_ML")
    a("s_cmp_ge_u32 s15, 12")
    a("s_cbranch_scc1 K1_FIN")
    a("s_mov_b32 s43, s62")
    a("s_lshl_b32 s45, s14, 2")
    a("s_add_u32 s45, s45, s63")
    h_addr()
    h_epi(ACC, ACC + 16, 0)
    a.label("K1_FIN")
    rt_end(a, 4, wg=200, wave=5, kidx=0)
    a.label("K1_END")
    a("s_endpgm")
    return a.finalize(), 128, 102

D_NST = 3
WS_P1 = 20 << 20
K2_DRING = 131072 + 2048
K2_LDS = K2_DRING + 4 * D_NST * 2048
def gen_k2():
    a = Asm()
    a("s_cmp_ge_u32 s2, 256")
    a("s_cbranch_scc1 K2_END")
    rt_start(a)
    stamp(a, 0)
    a("s_load_dwordx2 s[12:13], s[0:1], 72")
    a("s_load_dwordx2 s[4:5], s[0:1], 0")
    a("s_load_dwordx2 s[6:7], s[0:1], 48")
    a("s_and_b32 s14, s2, 31")
    a("s_lshr_b32 s15, s2, 5")
    a("s_and_b32 s50, s2, 7")
    a("s_lshl_b32 s50, s50, 3")
    a("s_bfe_u32 s51, s2, 0x30003")
    a("s_add_u32 s50, s50, s51")
    a("s_lshr_b32 s51, s2, 6")
    a("v_lshrrev_b32 v1, 6, v0")
    a("v_readfirstlane_b32 s16, v1")
    a("v_and_b32 v2, 63, v0")
    a("s_waitcnt lgkmcnt(0)")
    srd(a, 24, 12, 0x10000000)
    a("v_lshlrev_b32 v3, 4, v2")
    a("s_cmp_ge_u32 s16, 8")
    a("s_cbranch_scc1 K2_DOWN")
    a("s_lshl_b32 s17, s14, 16")
    a("s_lshl_b32 s22, s15, 3")
    a("s_add_u32 s22, s22, s16")
    a("s_lshl_b32 s23, s22, 10")
    a("s_add_u32 s23, s23, s17")
    a(f"s_add_u32 s23, s23, {WS_Q}")
    a("buffer_load_dwordx4 v[8:11], v3, s[24:27], s23 offen")
    a("s_lshl_b32 s18, s16, 13")
    a("s_add_u32 s19, s17, s18")
    a(f"s_add_u32 s20, s19, {WS_K}")
    a(f"s_add_u32 s21, s19, {WS_V}")
    a("s_mov_b32 s28, 0")
    a.label("K2_DMA")
    a("s_add_u32 m0, s18, s28")
    a("buffer_load_dwordx4 v3, s[24:27], s20 offen lds")
    a("s_add_u32 s20, s20, 1024")
    a("s_add_u32 s28, s28, 1024")
    a("s_cmp_lt_u32 s28, 8192")
    a("s_cbranch_scc1 K2_DMA")
    a("s_add_u32 s29, s18, 57344")
    a.label("K2_DMAV")
    a("s_add_u32 m0, s29, s28")
    a("buffer_load_dwordx4 v3, s[24:27], s21 offen lds")
    a("s_add_u32 s21, s21, 1024")
    a("s_add_u32 s28, s28, 1024")
    a("s_cmp_lt_u32 s28, 16384")
    a("s_cbranch_scc1 K2_DMAV")
    a("v_and_b32 v4, 31, v2")
    a("v_lshrrev_b32 v5, 5, v2")
    a("v_and_b32 v6, 15, v2")
    a("v_lshlrev_b32 v6, 4, v6")
    a("v_lshl_add_u32 v6, v5, 8, v6")
    a("v_add_u32 v6, 0x10000, v6")
    a("v_cmp_gt_u32 s[30:31], 16, v4")
    a("v_cmp_eq_u32 vcc, 16, v4")
    a("v_mov_b32 v7, 0x3f803f80")
    a("v_cndmask_b32 v7, 0, v7, vcc")
    VB = [40, 48]; KB = [12, 16]; SB = [64, 80]; OACC = 96; CB = 112; P = 24
    for b in VB:
        for r in range(8): a(f"v_mov_b32 v{b+r}, v7")
    a("v_mov_b32 v20, 0xff800000")
    a("v_mov_b32 v21, 0xff800000")
    a("v_mov_b32 v22, v3")
    a("s_waitcnt vmcnt(8)")
    a("s_barrier")
    stamp(a, 1)
    a("s_and_b32 s40, s2, 7")
    a("s_lshl_b32 s40, s40, 2")
    a("s_bfe_u32 s41, s2, 0x20003")
    a("s_add_u32 s40, s40, s41")
    a(f"s_mul_i32 s40, s40, {2*86*1024}")
    a(f"s_add_u32 s32, s12, {WS_H}")
    a("s_addc_u32 s33, s13, 0")
    a("s_add_u32 s32, s32, s40")
    a("s_addc_u32 s33, s33, 0")
    a("s_and_b32 s33, s33, 0xffff")
    a(f"s_mov_b32 s34, {2*86*1024}")
    a("s_mov_b32 s35, 0x20000")
    srd(a, 36, 6, 1376 * 1024)
    a("v_lshlrev_b32 v34, 7, v2")
    a("s_lshl_b32 s40, s16, 13")
    for t in range(3):
        a("buffer_load_dword v36, v34, s[32:35], s40 offen")
        a("s_add_u32 s40, s40, 65536")
    a("v_lshlrev_b32 v34, 10, v2")
    a("s_lshr_b32 s41, s2, 5")
    a("s_lshl_b32 s41, s41, 7")
    a("v_add_u32 v34, s41, v34")
    a("s_lshl_b32 s40, s16, 16")
    for t in range(3):
        a("buffer_load_dword v36, v34, s[36:39], s40 offen")
        a("s_add_u32 s40, s40, 524288")
    def kread(buf, off): a(f"ds_read_b128 v[{KB[buf]}:{KB[buf]+3}], v22 offset:{off}")
    def qk(buf, c):
        S = SB[buf]
        a(f"v_mfma_f32_32x32x16_bf16 v[{S}:{S+15}], v[{KB[buf]}:{KB[buf]+3}], v[8:11], {c}")
    kread(0, 0)
    a("s_waitcnt lgkmcnt(0)")
    qk(0, "0")
    kread(1, 1024)
    a("s_mov_b32 s28, 0")
    a.label("K2_P1")
    for t in range(4):
        a("s_waitcnt lgkmcnt(0)")
        qk((t + 1) % 2, "0")
        kread(t % 2, (t + 2) * 1024)
        S = SB[t % 2]; m = 20 + (t % 2)
        for j in range(8):
            a(f"v_max3_f32 v{m}, v{m}, v{S+2*j}, v{S+2*j+1}")
    a("v_add_u32 v22, 4096, v22")
    a("s_add_u32 s28, s28, 4")
    a("s_cmp_lt_u32 s28, 64")
    a("s_cbranch_scc1 K2_P1")
    a("v_max_f32 v20, v20, v21")
    a("v_mov_b32 v21, v20")
    a("v_permlane32_swap_b32 v20, v21")
    a("v_max_f32 v20, v20, v21")
    a("v_sub_f32 v20, 0, v20")
    for r in range(16): a(f"v_mov_b32 v{CB+r}, v20")
    for r in range(16): a(f"v_mov_b32 v{OACC+r}, 0")
    stamp(a, 2)
    a("s_waitcnt vmcnt(6)")
    a("s_barrier")
    Cs = f"v[{CB}:{CB+15}]"
    a("v_mov_b32 v22, v3")
    a("v_mov_b32 v23, v6")
    def vread(buf, off):
        a("s_mov_b64 exec, s[30:31]")
        a(f"ds_read_b128 v[{VB[buf]}:{VB[buf]+3}], v23 offset:{off}")
        a(f"ds_read_b128 v[{VB[buf]+4}:{VB[buf]+7}], v23 offset:{off+512}")
        a("s_mov_b64 exec, -1")
    a("s_waitcnt lgkmcnt(0)")
    kread(0, 0)
    a("s_waitcnt lgkmcnt(0)")
    qk(0, Cs)
    kread(1, 1024)
    vread(0, 0)
    a("s_mov_b32 s28, 0")
    a.label("K2_P2")
    for t in range(2):
        S = SB[t]; V = VB[t]
        a("s_waitcnt lgkmcnt(0)")
        qk(1 - t, Cs)
        kread(t, (t + 2) * 1024)
        vread(1 - t, (t + 1) * 1024)
        for j in range(8):
            a(f"v_exp_f32 v{S+2*j}, v{S+2*j}")
            a(f"v_exp_f32 v{S+2*j+1}, v{S+2*j+1}")
            if j >= 1:
                a(f"v_cvt_pk_bf16_f32 v{P+j-1}, v{S+2*j-2}, v{S+2*j-1}")
            if j == 5:
                a(f"v_mfma_f32_32x32x16_bf16 v[{OACC}:{OACC+15}], v[{V}:{V+3}], v[{P}:{P+3}], v[{OACC}:{OACC+15}]")
        a(f"v_cvt_pk_bf16_f32 v{P+7}, v{S+14}, v{S+15}")
        a(f"v_mfma_f32_32x32x16_bf16 v[{OACC}:{OACC+15}], v[{V+4}:{V+7}], v[{P+4}:{P+7}], v[{OACC}:{OACC+15}]")
    a("v_add_u32 v22, 2048, v22")
    a("v_add_u32 v23, 2048, v23")
    a("s_add_u32 s28, s28, 2")
    a("s_cmp_lt_u32 s28, 64")
    a("s_cbranch_scc1 K2_P2")
    stamp(a, 3)
    a(f"v_mov_b32 v20, v{OACC+8}")
    a(f"v_mov_b32 v21, v{OACC+8}")
    a("v_permlane32_swap_b32 v20, v21")
    a("v_rcp_f32 v21, v20")
    for r in range(8):
        a(f"v_mul_f32 v26, v{OACC+r}, v21")
        a(f"v_fma_f32 v27, -v26, v20, v{OACC+r}")
        a(f"v_fma_f32 v{OACC+r}, v27, v21, v26")
    for j in range(4):
        a(f"v_cvt_pk_bf16_f32 v{28+j}, v{OACC+2*j}, v{OACC+2*j+1}")
    a("s_lshl_b32 s23, s22, 15")
    a("s_lshl_b32 s29, s14, 10")
    a("s_add_u32 s23, s23, s29")
    a(f"s_add_u32 s23, s23, {WS_O}")
    a("buffer_store_dwordx4 v[28:31], v3, s[24:27], s23 offen")
    rt_end(a, 5, wg=0, wave=0, kidx=1)
    a("s_branch K2_END")
    a.label("K2_DOWN")
    a("s_sub_u32 s17, s16, 8")
    a("s_and_b32 s19, s2, 7")
    a("s_lshl_b32 s19, s19, 2")
    a("s_bfe_u32 s20, s2, 0x20003")
    a("s_add_u32 s19, s19, s20")
    a("s_lshr_b32 s20, s2, 5")
    srd(a, 28, 6, 1376 * 1024)
    srd(a, 32, 12, H_BYTES, WS_H)
    srd(a, 36, 4, 2048 * 1024)
    a("v_bfe_u32 v7, v2, 3, 2")
    a("v_bfe_u32 v8, v2, 5, 1")
    a("v_lshl_add_u32 v7, v8, 3, v7")
    a("v_lshlrev_b32 v12, 10, v7")
    a("v_bfe_u32 v7, v2, 2, 1")
    a("v_bfe_u32 v8, v2, 4, 1")
    a("v_xor_b32 v7, v7, v8")
    a("v_lshl_add_u32 v12, v7, 6, v12")
    a("v_and_b32 v8, 3, v2")
    a("v_lshl_add_u32 v12, v8, 4, v12")
    a("s_lshl_b32 s21, s20, 7")
    a("v_add_u32 v12, s21, v12")
    a("v_add_u32 v13, 4096, v12")
    a("v_and_b32 v5, 15, v2")
    a("v_lshrrev_b32 v4, 5, v2")
    a("v_lshrrev_b32 v7, 2, v5")
    a("v_lshl_add_u32 v11, v4, 3, v7")
    a("v_lshlrev_b32 v11, 7, v11")
    a("v_bfe_u32 v7, v2, 3, 1")
    a("v_lshl_add_u32 v11, v7, 6, v11")
    a("v_and_b32 v7, 3, v5")
    a("v_lshl_add_u32 v11, v7, 3, v11")
    a("v_bfe_u32 v7, v2, 4, 1")
    a("v_lshl_add_u32 v11, v7, 5, v11")
    a(f"s_mul_i32 s22, s17, {D_NST*2048}")
    a(f"s_add_u32 s22, s22, {K2_DRING}")
    a("v_add_u32 v11, s22, v11")
    a("v_xor_b32 v10, 64, v11")
    a(f"v_add_u32 v14, {86*1024}, v3")
    a(f"s_mul_i32 s23, s19, {2*86*1024}")
    a(f"s_mul_i32 s40, s17, {22*16384}")
    a(f"s_mul_i32 s41, s17, {22*1024}")
    a("s_add_u32 s41, s41, s23")
    a(f"s_add_u32 s30, s40, {22*16384}")
    a(f"s_min_u32 s30, s30, {1376*1024}")
    DACC = 64; AOP = 16; WB = [40, 48]
    for r in range(64): a(f"v_mov_b32 v{DACC+r}, 0")
    def dissue(st):
        a(f"s_add_u32 m0, s22, {st*2048}")
        a("buffer_load_dwordx4 v12, s[28:31], s40 offen lds")
        a(f"s_add_u32 m0, s22, {st*2048+1024}")
        a("buffer_load_dwordx4 v13, s[28:31], s40 offen lds")
        a(f"buffer_load_dwordx4 v[{AOP+8*st}:{AOP+8*st+3}], v3, s[32:35], s41 offen")
        a(f"buffer_load_dwordx4 v[{AOP+8*st+4}:{AOP+8*st+7}], v14, s[32:35], s41 offen")
        a("s_add_u32 s40, s40, 16384")
        a("s_add_u32 s41, s41, 1024")
    for st in range(D_NST - 1): dissue(st)
    a("s_barrier")
    a("s_barrier")
    a("s_setprio 2")
    def wreads(st, buf):
        for u in range(2):
            ad = 11 if u == 0 else 10
            b = WB[buf] + 4 * u
            a(f"ds_read_b64_tr_b16 v[{b}:{b+1}], v{ad} offset:{st*2048}")
            a(f"ds_read_b64_tr_b16 v[{b+2}:{b+3}], v{ad} offset:{st*2048+512}")
    a(f"s_waitcnt vmcnt({4*(D_NST-2)})")
    wreads(0, 0)
    a("s_mov_b32 s42, 0")
    a.label("K2_DL")
    for i in range(2 * D_NST):
        st = i % D_NST
        dissue((st + D_NST - 1) % D_NST)
        a(f"s_waitcnt vmcnt({4*(D_NST-2)}) lgkmcnt(0)")
        wreads((st + 1) % D_NST, (i + 1) % 2)
        for rt in range(2):
            for u in range(2):
                d = DACC + 16 * (2 * rt + u); b = WB[i % 2] + 4 * u; ao = AOP + 8 * st + 4 * rt
                a(f"v_mfma_f32_32x32x16_bf16 v[{d}:{d+15}], v[{b}:{b+3}], v[{ao}:{ao+3}], v[{d}:{d+15}]")
    a(f"s_add_u32 s42, s42, {2*D_NST}")
    a("s_cmp_lt_u32 s42, 22")
    a("s_cbranch_scc1 K2_DL")
    a("s_cmp_lg_u32 s17, 0")
    a("s_cbranch_scc1 K2_DST")
    a("v_and_b32 v4, 31, v2")
    a("v_lshrrev_b32 v5, 5, v2")
    a("s_lshl_b32 s48, s19, 6")
    a("v_add_u32 v6, s48, v4")
    a("v_lshlrev_b32 v6, 10, v6")
    a("v_lshl_add_u32 v6, v5, 3, v6")
    a("v_add_u32 v6, s21, v6")
    for rt in range(2):
        a(f"s_mov_b32 s49, {rt*32768}")
        for q in range(8):
            a(f"buffer_load_dwordx2 v[{16+2*q}:{17+2*q}], v6, s[36:39], s49 offen offset:{16*q}")
        a("s_waitcnt vmcnt(0)")
        for u in range(2):
            for q in range(4):
                d = DACC + 16 * (2 * rt + u) + 4 * q; xr = 16 + 2 * (4 * u + q)
                for p in range(2):
                    a(f"v_lshlrev_b32 v44, 16, v{xr+p}")
                    a(f"v_and_b32 v45, 0xffff0000, v{xr+p}")
                    a(f"v_add_f32 v{d+2*p}, v{d+2*p}, v44")
                    a(f"v_add_f32 v{d+2*p+1}, v{d+2*p+1}, v45")
    a.label("K2_DST")
    a("s_lshl_b32 s23, s19, 16")
    a("s_lshl_b32 s48, s20, 12")
    a("s_add_u32 s23, s23, s48")
    a("s_lshl_b32 s48, s17, 21")
    a("s_add_u32 s23, s23, s48")
    a(f"s_add_u32 s23, s23, {WS_P}")
    for rt in range(2):
        for u in range(2):
            d = DACC + 16 * (2 * rt + u)
            for j in range(8):
                a(f"v_cvt_pk_bf16_f32 v{16+j}, v{d+2*j}, v{d+2*j+1}")
            a(f"buffer_store_dwordx4 v[16:19], v3, s[24:27], s23 offen")
            a(f"buffer_store_dwordx4 v[20:23], v3, s[24:27], s23 offen offset:1024")
            a(f"s_add_u32 s23, s23, {2048 if u == 0 else 32768 - 2048}")
    rt_end(a, 2, wg=0, wave=8, base=8, kidx=1)
    a.label("K2_END")
    a("s_endpgm")
    return a.finalize(), 128, 102

K3_LDS = 131072
def gen_k3():
    a = Asm()
    a("s_cmp_ge_u32 s2, 256")
    a("s_cbranch_scc1 K3_END")
    rt_start(a)
    stamp(a, 0)
    a("s_load_dwordx2 s[6:7], s[0:1], 16")
    a("s_load_dwordx2 s[10:11], s[0:1], 56")
    a("s_load_dwordx2 s[12:13], s[0:1], 72")
    a("v_lshrrev_b32 v1, 6, v0")
    a("v_readfirstlane_b32 s16, v1")
    a("v_and_b32 v2, 63, v0")
    a("s_and_b32 s14, s2, 7")
    a("s_lshl_b32 s14, s14, 2")
    a("s_bfe_u32 s15, s2, 0x20003")
    a("s_add_u32 s14, s14, s15")
    a("s_lshr_b32 s15, s2, 5")
    a("s_lshr_b32 s17, s16, 1")
    a("s_and_b32 s18, s16, 1")
    a("s_waitcnt lgkmcnt(0)")
    srd(a, 32, 10, 2048 * 1024)
    srd(a, 24, 12, 0x10000000)
    srd(a, 28, 6, 512 * 1024)
    a("v_lshlrev_b32 v3, 4, v2")
    a("s_lshl_b32 s19, s14, 1")
    a("s_add_u32 s19, s19, s17")
    a("s_lshl_b32 s21, s19, 4")
    a("s_lshl_b32 s22, s15, 1")
    a("s_add_u32 s22, s22, s18")
    a("s_add_u32 s21, s21, s22")
    a("s_lshl_b32 s21, s21, 11")
    a(f"s_add_u32 s21, s21, {WS_P}")
    ACC = 64
    for pq in range(4):
        a(f"buffer_load_dwordx4 v[{80+8*pq}:{83+8*pq}], v3, s[24:27], s21 offen")
        a(f"buffer_load_dwordx4 v[{84+8*pq}:{87+8*pq}], v3, s[24:27], s21 offen offset:1024")
        a(f"s_add_u32 s21, s21, {2 << 20}")
    a("s_lshl_b32 s23, s19, 15")
    a("s_lshl_b32 s40, s18, 14")
    a("s_add_u32 s23, s23, s40")
    a(f"s_add_u32 s23, s23, {WS_O}")
    a("s_lshl_b32 s41, s16, 14")
    perm_row(a, 12, 7, 8)
    a("v_lshlrev_b32 v12, 10, v12")
    a("v_and_b32 v8, 3, v2")
    a("v_lshl_add_u32 v12, v8, 4, v12")
    a("s_lshl_b32 s42, s22, 6")
    a("v_add_u32 v12, s42, v12")
    a("s_lshl_b32 s43, s17, 18")
    a("s_lshl_b32 s44, s18, 15")
    a("s_lshl_b32 s45, s17, 14")
    a("s_add_u32 s44, s44, s45")
    a("s_add_u32 s44, s44, 65536")
    a("s_mov_b32 s46, 0")
    a.label("K3_DMA")
    a("s_mov_b32 m0, s41")
    a("buffer_load_dwordx4 v3, s[24:27], s23 offen lds")
    a("s_mov_b32 m0, s44")
    a("buffer_load_dwordx4 v12, s[28:31], s43 offen lds")
    a("s_add_u32 s23, s23, 1024")
    a("s_add_u32 s41, s41, 1024")
    a("s_add_u32 s43, s43, 16384")
    a("s_add_u32 s44, s44, 1024")
    a("s_add_u32 s46, s46, 1")
    a("s_cmp_lt_u32 s46, 16")
    a("s_cbranch_scc1 K3_DMA")
    a("s_lshl_b32 s47, s17, 15")
    a("v_add_u32 v10, s47, v3")
    tr_addr(a, 11, 7, 8)
    a("s_lshl_b32 s47, s18, 15")
    a("s_add_u32 s47, s47, 65536")
    a("v_add_u32 v11, s47, v11")
    a("s_waitcnt vmcnt(0)")
    for j in range(8):
        a(f"v_lshlrev_b32 v{ACC+2*j}, 16, v{80+j}")
        a(f"v_and_b32 v{ACC+2*j+1}, 0xffff0000, v{80+j}")
        for pq in range(1, 4):
            a(f"v_lshlrev_b32 v40, 16, v{80+8*pq+j}")
            a(f"v_and_b32 v41, 0xffff0000, v{80+8*pq+j}")
            a(f"v_add_f32 v{ACC+2*j}, v{ACC+2*j}, v40")
            a(f"v_add_f32 v{ACC+2*j+1}, v{ACC+2*j+1}, v41")
    a("s_barrier")
    stamp(a, 1)
    OP = [16, 24]
    def reads(buf, off):
        b = OP[buf]
        a(f"ds_read_b128 v[{b}:{b+3}], v10 offset:{off}")
        a(f"ds_read_b64_tr_b16 v[{b+4}:{b+5}], v11 offset:{off}")
        a(f"ds_read_b64_tr_b16 v[{b+6}:{b+7}], v11 offset:{off+256}")
    reads(0, 0)
    a("s_mov_b32 s46, 0")
    a.label("K3_L")
    for s in range(4):
        b = OP[s % 2]
        reads((s + 1) % 2, (s + 1) * 1024)
        a("s_waitcnt lgkmcnt(3)")
        a(f"v_mfma_f32_32x32x16_bf16 v[{ACC}:{ACC+15}], v[{b+4}:{b+7}], v[{b}:{b+3}], v[{ACC}:{ACC+15}]")
    a("v_add_u32 v10, 4096, v10")
    a("v_add_u32 v11, 4096, v11")
    a("s_add_u32 s46, s46, 4")
    a("s_cmp_lt_u32 s46, 32")
    a("s_cbranch_scc1 K3_L")
    a("v_and_b32 v4, 31, v2")
    a("v_lshrrev_b32 v5, 5, v2")
    a("s_lshl_b32 s47, s19, 5")
    a("v_add_u32 v6, s47, v4")
    a("v_lshlrev_b32 v6, 10, v6")
    a("v_lshl_add_u32 v6, v5, 3, v6")
    a("v_add_u32 v6, s42, v6")
    for q in range(4):
        a(f"v_cvt_pk_bf16_f32 v{32+2*q}, v{ACC+4*q}, v{ACC+4*q+1}")
        a(f"v_cvt_pk_bf16_f32 v{33+2*q}, v{ACC+4*q+2}, v{ACC+4*q+3}")
        a(f"buffer_store_dwordx2 v[{32+2*q}:{33+2*q}], v6, s[32:35], 0 offen offset:{16*q}")
    rt_end(a, 3, wg=0, wave=0, kidx=2)
    a.label("K3_END")
    a("s_endpgm")
    return a.finalize(), 128, 102

def desc(name, nv, ns):
    return f""".amdhsa_kernel {name}
  .amdhsa_next_free_vgpr {nv}
  .amdhsa_next_free_sgpr {ns}
  .amdhsa_accum_offset {nv}
  .amdhsa_group_segment_fixed_size 0
  .amdhsa_kernarg_size 80
  .amdhsa_user_sgpr_count 2
  .amdhsa_user_sgpr_kernarg_segment_ptr 1
  .amdhsa_system_sgpr_workgroup_id_x 1
.end_amdhsa_kernel"""

def build(path):
    ks = [("k0_kernel", gen_k0(), 128, 256, 0), ("k1_kernel", gen_k1(), 256, 576, K1_LDS), ("k2_kernel", gen_k2(), 256, 768, K2_LDS), ("k3_kernel", gen_k3(), 256, 256, K3_LDS + 1024)]
    out = []
    for n, _, g, b, l in ks:
        out.append(f"; @launch kernel={n} grid=({g},1,1) block=({b},1,1) lds={l}")
    out += ['.amdgcn_target "amdgcn-amd-amdhsa--gfx950"', ".text"]
    for n, (txt, nv, ns), *_ in ks:
        out += [f".globl {n}", ".p2align 8", f".type {n},@function", f"{n}:", txt]
    out.append('.section .rodata,"a"')
    for n, (txt, nv, ns), *_ in ks:
        out += [".p2align 6", desc(n, nv, ns)]
    open(path, "w").write("\n".join(out) + "\n")

if __name__ == "__main__":
    if "stamp" in sys.argv: STAMP = True
    build(sys.argv[1])
```

```python
import sys, struct
sys.path.insert(0, "work")
from asmgen import Asm

WS_Q = 0
WS_K = 2 << 20
WS_V = 4 << 20
WS_H = 6 << 20
WS_O = 12 << 20
WS_P = 16 << 20
H_BYTES = 64 * 86 * 1024
C_SCALE = 0.25 * 1.4426950408889634
STAMP = False
DPRIO = 2
YPRIO = 0
_uid = 0

def f32hex(x): return "0x%08x" % struct.unpack("<I", struct.pack("<f", x))[0]

def srd(a, d, ptr_lo, nbytes, off=0):
    if off:
        a(f"s_add_u32 s{d}, s{ptr_lo}, {off}")
        a(f"s_addc_u32 s{d+1}, s{ptr_lo+1}, 0")
        a(f"s_and_b32 s{d+1}, s{d+1}, 0xffff")
    else:
        a(f"s_mov_b32 s{d}, s{ptr_lo}")
        a(f"s_and_b32 s{d+1}, s{ptr_lo+1}, 0xffff")
    a(f"s_mov_b32 s{d+2}, {nbytes}")
    a(f"s_mov_b32 s{d+3}, 0x20000")

def bf16r(a, dst, src):
    a(f"v_cvt_pk_bf16_f32 v{dst}, v{src}, v{src}")
    a(f"v_lshlrev_b32 v{dst}, 16, v{dst}")

def stamp(a, i):
    if not STAMP: return
    a("s_memtime s[90:91]")
    a("s_waitcnt lgkmcnt(0)")
    a(f"s_mov_b32 s{70+i}, s90")

def dbg_srd(a):
    a("s_load_dwordx2 s[92:93], s[0:1], 64")
    a("s_waitcnt lgkmcnt(0)")
    a("s_mov_b32 s96, s92")
    a("s_and_b32 s97, s93, 0xffff")
    a("s_mov_b32 s98, 256")
    a("s_mov_b32 s99, 0x20000")

WS_DBG = 40 << 20
def rt_start(a):
    if not STAMP: return
    dbg_srd(a)
    a("s_memrealtime s[90:91]")
    a("s_waitcnt lgkmcnt(0)")
    a("s_mov_b32 s88, s90")

def rt_end(a, n, wave_sreg=16, wg=0, wave=0, base=0, kidx=0):
    if not STAMP: return
    global _uid
    a("s_waitcnt vmcnt(0) lgkmcnt(0)")
    stamp(a, n - 1)
    a("s_memrealtime s[90:91]")
    a("s_waitcnt lgkmcnt(0)")
    a("v_and_b32 v2, 63, v0")
    a("v_cmp_eq_u32 vcc, 0, v2")
    a("s_and_saveexec_b64 s[94:95], vcc")
    a("s_lshl_b32 s89, s2, 4")
    a(f"s_add_u32 s89, s89, s{wave_sreg}")
    a("s_lshl_b32 s89, s89, 3")
    a(f"s_add_u32 s89, s89, {WS_DBG + kidx*65536}")
    a("v_mov_b32 v4, s88")
    a("v_mov_b32 v5, s90")
    a("buffer_store_dwordx2 v[4:5], v2, s[24:27], s89 offen")
    _uid += 1
    lab = f"STF_{_uid}"
    a(f"s_cmp_lg_u32 s2, {wg}")
    a(f"s_cbranch_scc1 {lab}")
    a(f"s_cmp_lg_u32 s{wave_sreg}, {wave}")
    a(f"s_cbranch_scc1 {lab}")
    for i in range(1, n):
        a(f"s_sub_u32 s90, s{70+i}, s70")
        a("v_mov_b32 v1, s90")
        a(f"buffer_store_dword v1, v2, s[96:99], 0 offen offset:{4*(base+i)}")
    a.label(lab)
    a("s_waitcnt vmcnt(0)")

def tr_addr(a, dst, t0, t1, lane=2):
    a(f"v_and_b32 v{t0}, 15, v{lane}")
    a(f"v_lshrrev_b32 v{dst}, 2, v{t0}")
    a(f"v_lshrrev_b32 v{t1}, 5, v{lane}")
    a(f"v_lshl_add_u32 v{dst}, v{t1}, 3, v{dst}")
    a(f"v_lshlrev_b32 v{dst}, 6, v{dst}")
    a(f"v_and_b32 v{t0}, 3, v{t0}")
    a(f"v_lshlrev_b32 v{t0}, 3, v{t0}")
    a(f"v_bfe_u32 v{t1}, v{lane}, 4, 1")
    a(f"v_lshl_add_u32 v{t0}, v{t1}, 5, v{t0}")
    a(f"v_add_u32 v{dst}, v{dst}, v{t0}")

def perm_row(a, dst, t0, t1, lane=2):
    a(f"v_lshrrev_b32 v{t0}, 2, v{lane}")
    a(f"v_and_b32 v{dst}, 3, v{t0}")
    a(f"v_bfe_u32 v{t1}, v{t0}, 3, 1")
    a(f"v_lshl_add_u32 v{dst}, v{t1}, 2, v{dst}")
    a(f"v_bfe_u32 v{t1}, v{t0}, 2, 1")
    a(f"v_lshl_add_u32 v{dst}, v{t1}, 3, v{dst}")

WS_XN = 32 << 20
def gen_k0():
    a = Asm()
    a("s_cmp_ge_u32 s2, 128")
    a("s_cbranch_scc1 K0_END")
    rt_start(a)
    stamp(a, 0)
    a("s_load_dwordx2 s[4:5], s[0:1], 0")
    a("s_load_dwordx2 s[12:13], s[0:1], 72")
    a("v_lshrrev_b32 v1, 6, v0")
    a("v_readfirstlane_b32 s16, v1")
    a("v_and_b32 v2, 63, v0")
    a("s_waitcnt lgkmcnt(0)")
    srd(a, 20, 4, 2048 * 1024)
    srd(a, 24, 12, 0x10000000)
    a("v_lshrrev_b32 v3, 4, v2")
    a("v_and_b32 v4, 15, v2")
    a("s_lshl_b32 s17, s2, 4")
    a("s_lshl_b32 s18, s16, 2")
    a("s_add_u32 s17, s17, s18")
    a("v_add_u32 v5, s17, v3")
    a("v_lshlrev_b32 v6, 10, v5")
    a("v_lshl_add_u32 v6, v4, 4, v6")
    X = 8; U = 32
    for c in range(4):
        a(f"buffer_load_dwordx4 v[{X+4*c}:{X+4*c+3}], v6, s[20:23], 0 offen offset:{256*c}")
    a("v_lshrrev_b32 v7, 5, v5")
    a("v_lshlrev_b32 v7, 15, v7")
    a("v_lshrrev_b32 v66, 1, v4")
    a("v_lshl_add_u32 v7, v66, 10, v7")
    a("v_and_b32 v66, 1, v4")
    a("v_lshl_add_u32 v7, v66, 9, v7")
    a("v_and_b32 v66, 31, v5")
    a("v_lshl_add_u32 v7, v66, 4, v7")
    a("s_waitcnt vmcnt(0)")
    def red16(r, t):
        for ctl in ("quad_perm:[1,0,3,2]", "quad_perm:[2,3,0,1]", "row_half_mirror", "row_mirror"):
            a(f"v_add_f32_dpp v{t}, v{r}, v{r} {ctl} row_mask:0xf bank_mask:0xf")
            a(f"v_mov_b32 v{r}, v{t}")
    for d in range(16):
        a(f"v_lshlrev_b32 v{U+2*d}, 16, v{X+d}")
        a(f"v_and_b32 v{U+2*d+1}, 0xffff0000, v{X+d}")
    a(f"v_add_f32 v67, v{U}, v{U+1}")
    a(f"v_add_f32 v68, v{U+2}, v{U+3}")
    for j in range(4, 32, 2):
        a(f"v_add_f32 v67, v67, v{U+j}")
        a(f"v_add_f32 v68, v68, v{U+j+1}")
    a("v_add_f32 v67, v67, v68")
    red16(67, 68)
    a(f"v_mul_f32 v67, {f32hex(1/512)}, v67")
    a(f"v_sub_f32 v69, v{U}, v67")
    a("v_mul_f32 v70, v69, v69")
    a(f"v_sub_f32 v71, v{U+1}, v67")
    a("v_mul_f32 v72, v71, v71")
    for j in range(2, 32, 2):
        a(f"v_sub_f32 v69, v{U+j}, v67")
        a("v_fmac_f32 v70, v69, v69")
        a(f"v_sub_f32 v71, v{U+j+1}, v67")
        a("v_fmac_f32 v72, v71, v71")
    a("v_add_f32 v70, v70, v72")
    red16(70, 68)
    a(f"v_mul_f32 v70, {f32hex(1/512)}, v70")
    bf16r(a, 67, 67)
    bf16r(a, 70, 70)
    a(f"v_add_f32 v70, {f32hex(1e-5)}, v70")
    bf16r(a, 70, 70)
    a("v_sqrt_f32 v70, v70")
    bf16r(a, 70, 70)
    a("v_rcp_f32 v71, v70")
    for d in range(16):
        for h in range(2):
            r = U + 2 * d + h
            a(f"v_sub_f32 v{r}, v{r}, v67")
        a(f"v_cvt_pk_bf16_f32 v72, v{U+2*d}, v{U+2*d+1}")
        a(f"v_lshlrev_b32 v{U+2*d}, 16, v72")
        a(f"v_and_b32 v{U+2*d+1}, 0xffff0000, v72")
        for h in range(2):
            r = U + 2 * d + h
            a(f"v_mul_f32 v73, v{r}, v71")
            a(f"v_fma_f32 v74, -v73, v70, v{r}")
            a(f"v_fma_f32 v{r}, v74, v71, v73")
        a(f"v_cvt_pk_bf16_f32 v{X+d}, v{U+2*d}, v{U+2*d+1}")
    for c in range(4):
        a(f"s_mov_b32 s19, {WS_XN + 8192*c}")
        a(f"buffer_store_dwordx4 v[{X+4*c}:{X+4*c+3}], v7, s[24:27], s19 offen")
    rt_end(a, 2, wg=0, wave=0, kidx=3)
    a.label("K0_END")
    a("s_endpgm")
    return a.finalize(), 80, 102

K1_NS = 8
K1_SS = 14336
K1_LDS = K1_NS * K1_SS

def gen_k1():
    a = Asm()
    a("s_cmp_ge_u32 s2, 256")
    a("s_cbranch_scc1 K1_END")
    rt_start(a)
    stamp(a, 0)
    a("s_load_dwordx2 s[6:7], s[0:1], 8")
    a("s_load_dwordx4 s[8:11], s[0:1], 32")
    a("s_load_dwordx2 s[12:13], s[0:1], 72")
    a("s_lshr_b32 s14, s2, 4")
    a("s_and_b32 s15, s2, 7")
    a("s_lshl_b32 s15, s15, 1")
    a("s_bfe_u32 s17, s2, 0x10003")
    a("s_add_u32 s15, s15, s17")
    a("v_lshrrev_b32 v1, 6, v0")
    a("v_readfirstlane_b32 s16, v1")
    a("v_and_b32 v2, 63, v0")
    a("s_waitcnt lgkmcnt(0)")
    srd(a, 24, 12, 0x10000000)
    srd(a, 48, 8, 512 * 2752)
    srd(a, 52, 10, 512 * 2752)
    a("v_lshlrev_b32 v6, 4, v2")
    a("v_and_b32 v3, 31, v2")
    a("v_lshrrev_b32 v4, 5, v2")
    a("v_and_b32 v5, 15, v2")
    a(f"s_mov_b32 s46, {f32hex(-1.4426950408889634)}")
    ACC = 64; XA = [16, 32]
    a("s_cmp_eq_u32 s16, 8")
    a("s_cbranch_scc1 K1_MINI")
    a("s_lshr_b32 s19, s16, 2")
    a("s_and_b32 s21, s16, 3")
    a("s_cmp_lt_u32 s15, 6")
    a("s_cbranch_scc0 K1_FFN")
    srd(a, 28, 6, 512 * 3072)
    a("s_mov_b32 s36, 3072")
    a("s_lshl_b32 s37, s15, 9")
    a("s_lshl_b32 s38, s19, 8")
    a("s_add_u32 s37, s37, s38")
    a("s_branch K1_SEL")
    a.label("K1_FFN")
    a("s_cmp_eq_u32 s19, 0")
    a("s_cselect_b32 s28, s48, s52")
    a("s_cselect_b32 s29, s49, s53")
    a(f"s_mov_b32 s30, {512*2752}")
    a("s_mov_b32 s31, 0x20000")
    a("s_mov_b32 s36, 2752")
    a("s_sub_u32 s37, s15, 6")
    a("s_lshl_b32 s37, s37, 8")
    a.label("K1_SEL")
    a("v_lshrrev_b32 v7, 4, v2")
    a("v_bfe_u32 v8, v2, 2, 2")
    a("v_xor_b32 v8, v8, v7")
    a("v_lshlrev_b32 v8, 6, v8")
    a("v_and_b32 v9, 3, v2")
    a("v_lshl_add_u32 v8, v9, 4, v8")
    a("s_lshl_b32 s38, s21, 2")
    a("v_add_u32 v7, s38, v7")
    a("v_mul_lo_u32 v12, v7, s36")
    a("v_add_u32 v12, v12, v8")
    a("v_add_u32 v12, s37, v12")
    a("s_lshl_b32 s39, s36, 4")
    a("s_lshl_b32 s18, s16, 10")
    a("s_lshl_b32 s41, s14, 2")
    a("s_add_u32 s41, s41, s21")
    a("s_lshl_b32 s41, s41, 15")
    a("s_lshl_b32 s42, s19, 10")
    a("s_add_u32 s41, s41, s42")
    a(f"s_add_u32 s41, s41, {WS_XN}")
    a("s_lshl_b32 s43, s21, 10")
    a("s_add_u32 s43, s43, 8192")
    a("s_mov_b32 s40, 0")
    def issue(st):
        a(f"s_add_u32 m0, s18, {st*K1_SS}")
        a("buffer_load_dwordx4 v12, s[28:31], s40 offen lds")
        a("s_add_u32 s40, s40, s39")
        if st % 2 == 0:
            a(f"s_mul_i32 s44, s19, {K1_SS}")
            a("s_add_u32 s44, s44, s43")
            a(f"s_add_u32 m0, s44, {st*K1_SS}")
            a("buffer_load_dwordx4 v6, s[24:27], s41 offen lds")
            a("s_add_u32 s41, s41, 2048")
    for st in range(K1_NS - 2): issue(st)
    a("s_lshl_b32 s45, s19, 11")
    a("s_add_u32 s45, s45, 8192")
    a("v_add_u32 v10, s45, v6")
    a("v_lshrrev_b32 v7, 2, v5")
    a("v_lshl_add_u32 v11, v4, 3, v7")
    a("v_lshlrev_b32 v11, 8, v11")
    a("v_xor_b32 v7, s21, v7")
    a("v_lshl_add_u32 v11, v7, 6, v11")
    a("v_and_b32 v7, 3, v5")
    a("v_lshl_add_u32 v11, v7, 3, v11")
    a("v_bfe_u32 v7, v2, 4, 1")
    a("v_lshl_add_u32 v11, v7, 5, v11")
    a(f"v_add_u32 v13, {4*K1_SS}, v10")
    a(f"v_add_u32 v14, {4*K1_SS}, v11")
    for r in range(64): a(f"v_mov_b32 v{ACC+r}, 0")
    a(f"s_waitcnt vmcnt({3*(K1_NS-2)//2 - 3})")
    a("s_barrier")
    stamp(a, 1)

    def loop(tag, vorient):
        def reads(st, base):
            ra, rw = (10, 11) if st < 4 else (13, 14)
            so = (st % 4) * K1_SS
            for rt in range(2):
                a(f"ds_read_b128 v[{base+4*rt}:{base+4*rt+3}], v{ra} offset:{so + rt*1024}")
            for u in range(2):
                o = so + u * 4096
                a(f"ds_read_b64_tr_b16 v[{base+8+4*u}:{base+9+4*u}], v{rw} offset:{o}")
                a(f"ds_read_b64_tr_b16 v[{base+10+4*u}:{base+11+4*u}], v{rw} offset:{o+1024}")
        reads(0, XA[0])
        a("s_mov_b32 s47, 0")
        a.label(f"K1_L{tag}")
        for s in range(K1_NS):
            cur = XA[s % 2]; nxt = XA[(s + 1) % 2]
            if s % 2 == 1:
                a("s_waitcnt lgkmcnt(0)")
                a(f"s_waitcnt vmcnt({3*(K1_NS-2)//2 - 6})")
                a("s_barrier")
                issue((s + K1_NS - 3) % K1_NS)
                issue((s + K1_NS - 2) % K1_NS)
            else:
                a("s_waitcnt lgkmcnt(0)")
            reads((s + 1) % K1_NS, nxt)
            for rt in range(2):
                for u in range(2):
                    d = ACC + 16 * (2 * rt + u)
                    xa = f"v[{cur+4*rt}:{cur+4*rt+3}]"; wa = f"v[{cur+8+4*u}:{cur+11+4*u}]"
                    A, B = (xa, wa) if vorient else (wa, xa)
                    a(f"v_mfma_f32_32x32x16_bf16 v[{d}:{d+15}], {A}, {B}, v[{d}:{d+15}]")
        a("s_add_u32 s47, s47, 1")
        a(f"s_cmp_lt_u32 s47, {32//K1_NS}")
        a(f"s_cbranch_scc1 K1_L{tag}")

    def h_epi(dg, du, soff):
        for ks in range(2):
            for p in range(4):
                r0 = 8 * ks + 2 * p
                a(f"v_cvt_pk_bf16_f32 v20, v{dg+r0}, v{dg+r0+1}")
                a(f"v_cvt_pk_bf16_f32 v21, v{du+r0}, v{du+r0+1}")
                a("v_lshlrev_b32 v22, 16, v20")
                a("v_and_b32 v23, 0xffff0000, v20")
                a("v_lshlrev_b32 v24, 16, v21")
                a("v_and_b32 v25, 0xffff0000, v21")
                for g in (22, 23):
                    a(f"v_mul_f32 v26, s46, v{g}")
                    a("v_exp_f32 v26, v26")
                    a("v_add_f32 v26, 1.0, v26")
                    a("v_rcp_f32 v26, v26")
                    a(f"v_mul_f32 v{g}, v{g}, v26")
                a("v_cvt_pk_bf16_f32 v20, v22, v23")
                a("v_lshlrev_b32 v22, 16, v20")
                a("v_and_b32 v23, 0xffff0000, v20")
                a("v_mul_f32 v22, v22, v24")
                a("v_mul_f32 v23, v23, v25")
                a(f"v_cvt_pk_bf16_f32 v{16+p}, v22, v23")
            a(f"s_mov_b32 s47, {soff + ks*1024}")
            a("buffer_store_dwordx4 v[16:19], v9, s[24:27], s47 offen")

    def h_addr():
        a(f"s_mul_i32 s45, s45, {86*1024}")
        a("s_lshl_b32 s43, s43, 11")
        a("s_add_u32 s43, s43, s45")
        a(f"s_add_u32 s43, s43, {WS_H}")
        a("v_add_u32 v9, s43, v6")

    a("s_lshl_b32 s42, s14, 2")
    a("s_lshl_b32 s43, s19, 1")
    a("s_add_u32 s42, s42, s43")
    a("s_cmp_ge_u32 s15, 4")
    a("s_cselect_b32 s58, 1, 0")
    a("s_cmp_lt_u32 s15, 6")
    a("s_cselect_b32 s59, 1, 0")
    a("s_and_b32 s58, s58, s59")
    a("s_lshl_b32 s43, s21, 10")
    a("s_add_u32 s43, s43, 8192")
    a("s_cmp_eq_u32 s58, 1")
    a("s_cbranch_scc1 K1_VLOOP")
    loop("T", False)
    stamp(a, 2)
    a("s_cmp_ge_u32 s15, 6")
    a("s_cbranch_scc1 K1_EPI_H")
    a("s_lshr_b32 s43, s15, 1")
    a("s_lshl_b32 s43, s43, 21")
    a("s_and_b32 s44, s15, 1")
    a("s_lshl_b32 s44, s44, 20")
    a("s_add_u32 s43, s43, s44")
    a("s_lshl_b32 s44, s21, 17")
    a("s_add_u32 s43, s43, s44")
    a("s_lshl_b32 s44, s42, 10")
    a("s_add_u32 s43, s43, s44")
    a("v_add_u32 v9, s43, v6")
    a("s_cmp_lt_u32 s15, 2")
    a(f"s_cselect_b32 s44, {f32hex(C_SCALE)}, 1.0")
    a("v_mov_b32 v28, s44")
    for rt in range(2):
        for u in range(2):
            d = ACC + 16 * (2 * rt + u)
            for hh in range(2):
                for j in range(8):
                    a(f"v_mul_f32 v{d+8*hh+j}, v{d+8*hh+j}, v28")
                for j in range(4):
                    a(f"v_cvt_pk_bf16_f32 v{16+j}, v{d+8*hh+2*j}, v{d+8*hh+2*j+1}")
                a(f"s_mov_b32 s45, {(8 * u + hh) * 65536 + rt * 1024}")
                a("buffer_store_dwordx4 v[16:19], v9, s[24:27], s45 offen")
    a("s_branch K1_FIN")
    a.label("K1_EPI_H")
    a("s_sub_u32 s43, s15, 6")
    a("s_lshl_b32 s43, s43, 2")
    a("s_add_u32 s43, s43, s21")
    a("s_mov_b32 s45, s42")
    h_addr()
    for rt in range(2):
        h_epi(ACC + 32 * rt, ACC + 32 * rt + 16, rt * 86 * 1024)
    a("s_branch K1_FIN")
    a.label("K1_VLOOP")
    loop("V", True)
    a("s_and_b32 s43, s15, 1")
    a("s_lshl_b32 s43, s43, 20")
    a("s_lshl_b32 s44, s21, 17")
    a("s_add_u32 s43, s43, s44")
    a(f"s_add_u32 s43, s43, {WS_V}")
    a("s_lshl_b32 s44, s42, 10")
    a("s_add_u32 s43, s43, s44")
    a("v_lshrrev_b32 v9, 4, v3")
    a("v_lshlrev_b32 v9, 16, v9")
    a("v_lshl_add_u32 v9, v4, 8, v9")
    a("v_lshl_add_u32 v9, v5, 4, v9")
    a("v_add_u32 v9, s43, v9")
    for rt in range(2):
        for u in range(2):
            d = ACC + 16 * (2 * rt + u)
            for g in range(2):
                for j in range(4):
                    a(f"v_cvt_pk_bf16_f32 v{16+j}, v{d+8*g+2*j}, v{d+8*g+2*j+1}")
                a(f"s_mov_b32 s45, {8 * u * 65536 + rt * 1024 + g * 512}")
                a("buffer_store_dwordx4 v[16:19], v9, s[24:27], s45 offen")
    a("s_branch K1_FIN")
    a.label("K1_MINI")
    a("s_lshr_b32 s62, s15, 2")
    a("s_add_u32 s62, s62, 40")
    a("s_and_b32 s63, s15, 3")
    a("s_cmp_ge_u32 s15, 12")
    a("s_cselect_b32 s50, 0, s50")
    a(f"s_cselect_b32 s54, 0, {512*2752}")
    a("s_cselect_b32 s50, 0, s54")
    a("v_lshrrev_b32 v7, 2, v2")
    a("s_mov_b32 s56, 2752")
    a("v_mul_lo_u32 v15, v7, s56")
    a("v_and_b32 v8, 3, v2")
    a("v_lshl_add_u32 v15, v8, 4, v15")
    a("s_lshl_b32 s57, s62, 6")
    a("v_add_u32 v15, s57, v15")
    a("s_mov_b32 s40, 0")
    def missue(st):
        a(f"s_mov_b32 m0, {st*K1_SS + 12288}")
        a("buffer_load_dwordx4 v15, s[48:51], s40 offen lds")
        a(f"s_mov_b32 m0, {st*K1_SS + 13312}")
        a("buffer_load_dwordx4 v15, s[52:55], s40 offen lds")
        a(f"s_add_u32 s40, s40, {2752*16}")
    for st in range(K1_NS - 2): missue(st)
    tr_addr(a, 11, 7, 8)
    a("v_add_u32 v11, 12288, v11")
    a("s_lshl_b32 s45, s63, 10")
    a("s_add_u32 s45, s45, 8192")
    a("v_add_u32 v10, s45, v6")
    a(f"v_add_u32 v13, {4*K1_SS}, v10")
    a(f"v_add_u32 v14, {4*K1_SS}, v11")
    for r in range(32): a(f"v_mov_b32 v{ACC+r}, 0")
    a(f"s_waitcnt vmcnt({2*(K1_NS-2) - 4})")
    a("s_barrier")
    def mreads(st, base):
        ra, rw = (10, 11) if st < 4 else (13, 14)
        so = (st % 4) * K1_SS
        a(f"ds_read_b128 v[{base}:{base+3}], v{ra} offset:{so}")
        for u in range(2):
            a(f"ds_read_b64_tr_b16 v[{base+8+4*u}:{base+9+4*u}], v{rw} offset:{so + u*1024}")
            a(f"ds_read_b64_tr_b16 v[{base+10+4*u}:{base+11+4*u}], v{rw} offset:{so + u*1024+256}")
    mreads(0, XA[0])
    a("s_mov_b32 s47, 0")
    a.label("K1_ML")
    for s in range(K1_NS):
        cur = XA[s % 2]; nxt = XA[(s + 1) % 2]
        a("s_waitcnt lgkmcnt(0)")
        if s % 2 == 1:
            a(f"s_waitcnt vmcnt({2*(K1_NS-2) - 8})")
            a("s_barrier")
            missue((s + K1_NS - 3) % K1_NS)
            missue((s + K1_NS - 2) % K1_NS)
        mreads((s + 1) % K1_NS, nxt)
        for u in range(2):
            d = ACC + 16 * u
            a(f"v_mfma_f32_32x32x16_bf16 v[{d}:{d+15}], v[{cur+8+4*u}:{cur+11+4*u}], v[{cur}:{cur+3}], v[{d}:{d+15}]")
    a("s_add_u32 s47, s47, 1")
    a(f"s_cmp_lt_u32 s47, {32//K1_NS}")
    a("s_cbranch_scc1 K1_ML")
    a("s_cmp_ge_u32 s15, 12")
    a("s_cbranch_scc1 K1_FIN")
    a("s_mov_b32 s43, s62")
    a("s_lshl_b32 s45, s14, 2")
    a("s_add_u32 s45, s45, s63")
    h_addr()
    h_epi(ACC, ACC + 16, 0)
    a.label("K1_FIN")
    rt_end(a, 4, wg=200, wave=5, kidx=0)
    a.label("K1_END")
    a("s_endpgm")
    return a.finalize(), 128, 102

D_NST = 3
WS_P1 = 20 << 20
K2_DRING = 131072 + 2048
K2_LDS = K2_DRING + 4 * D_NST * 2048
def gen_k2():
    a = Asm()
    a("s_cmp_ge_u32 s2, 256")
    a("s_cbranch_scc1 K2_END")
    rt_start(a)
    stamp(a, 0)
    a("s_load_dwordx2 s[12:13], s[0:1], 72")
    a("s_load_dwordx2 s[4:5], s[0:1], 0")
    a("s_load_dwordx2 s[6:7], s[0:1], 48")
    a("s_and_b32 s14, s2, 31")
    a("s_lshr_b32 s15, s2, 5")
    a("s_and_b32 s50, s2, 7")
    a("s_lshl_b32 s50, s50, 3")
    a("s_bfe_u32 s51, s2, 0x30003")
    a("s_add_u32 s50, s50, s51")
    a("s_lshr_b32 s51, s2, 6")
    a("v_lshrrev_b32 v1, 6, v0")
    a("v_readfirstlane_b32 s16, v1")
    a("v_and_b32 v2, 63, v0")
    a("s_waitcnt lgkmcnt(0)")
    srd(a, 24, 12, 0x10000000)
    a("v_lshlrev_b32 v3, 4, v2")
    a("s_cmp_ge_u32 s16, 8")
    a("s_cbranch_scc1 K2_DOWN")
    a("s_lshl_b32 s17, s14, 16")
    a("s_lshl_b32 s22, s15, 3")
    a("s_add_u32 s22, s22, s16")
    a("s_lshl_b32 s23, s22, 10")
    a("s_add_u32 s23, s23, s17")
    a(f"s_add_u32 s23, s23, {WS_Q}")
    a("buffer_load_dwordx4 v[8:11], v3, s[24:27], s23 offen")
    a("s_lshl_b32 s18, s16, 13")
    a("s_add_u32 s19, s17, s18")
    a(f"s_add_u32 s20, s19, {WS_K}")
    a(f"s_add_u32 s21, s19, {WS_V}")
    a("s_mov_b32 s28, 0")
    a.label("K2_DMA")
    a("s_add_u32 m0, s18, s28")
    a("buffer_load_dwordx4 v3, s[24:27], s20 offen lds")
    a("s_add_u32 s20, s20, 1024")
    a("s_add_u32 s28, s28, 1024")
    a("s_cmp_lt_u32 s28, 8192")
    a("s_cbranch_scc1 K2_DMA")
    a("s_add_u32 s29, s18, 57344")
    a.label("K2_DMAV")
    a("s_add_u32 m0, s29, s28")
    a("buffer_load_dwordx4 v3, s[24:27], s21 offen lds")
    a("s_add_u32 s21, s21, 1024")
    a("s_add_u32 s28, s28, 1024")
    a("s_cmp_lt_u32 s28, 16384")
    a("s_cbranch_scc1 K2_DMAV")
    a("v_and_b32 v4, 31, v2")
    a("v_lshrrev_b32 v5, 5, v2")
    a("v_and_b32 v6, 15, v2")
    a("v_lshlrev_b32 v6, 4, v6")
    a("v_lshl_add_u32 v6, v5, 8, v6")
    a("v_add_u32 v6, 0x10000, v6")
    a("v_cmp_gt_u32 s[30:31], 16, v4")
    a("v_cmp_eq_u32 vcc, 16, v4")
    a("v_mov_b32 v7, 0x3f803f80")
    a("v_cndmask_b32 v7, 0, v7, vcc")
    VB = [40, 48]; KB = [12, 16]; SB = [64, 80]; OACC = 96; CB = 112; P = 24
    for b in VB:
        for r in range(8): a(f"v_mov_b32 v{b+r}, v7")
    a("v_mov_b32 v20, 0xff800000")
    a("v_mov_b32 v21, 0xff800000")
    a("v_mov_b32 v22, v3")
    a("s_waitcnt vmcnt(8)")
    a("s_barrier")
    stamp(a, 1)
    a("s_and_b32 s40, s2, 7")
    a("s_lshl_b32 s40, s40, 2")
    a("s_bfe_u32 s41, s2, 0x20003")
    a("s_add_u32 s40, s40, s41")
    a(f"s_mul_i32 s40, s40, {2*86*1024}")
    a(f"s_add_u32 s32, s12, {WS_H}")
    a("s_addc_u32 s33, s13, 0")
    a("s_add_u32 s32, s32, s40")
    a("s_addc_u32 s33, s33, 0")
    a("s_and_b32 s33, s33, 0xffff")
    a(f"s_mov_b32 s34, {2*86*1024}")
    a("s_mov_b32 s35, 0x20000")
    srd(a, 36, 6, 1376 * 1024)
    a("v_lshlrev_b32 v34, 7, v2")
    a("s_lshl_b32 s40, s16, 13")
    for t in range(3):
        a("buffer_load_dword v36, v34, s[32:35], s40 offen")
        a("s_add_u32 s40, s40, 65536")
    a("v_lshlrev_b32 v34, 10, v2")
    a("s_lshr_b32 s41, s2, 5")
    a("s_lshl_b32 s41, s41, 7")
    a("v_add_u32 v34, s41, v34")
    a("s_lshl_b32 s40, s16, 16")
    for t in range(3):
        a("buffer_load_dword v36, v34, s[36:39], s40 offen")
        a("s_add_u32 s40, s40, 524288")
    if YPRIO:
        a("s_cmp_lt_u32 s16, 4")
        a("s_cbranch_scc1 K2_NOPRIO")
        a(f"s_setprio {YPRIO}")
        a.label("K2_NOPRIO")
    def kread(buf, off): a(f"ds_read_b128 v[{KB[buf]}:{KB[buf]+3}], v22 offset:{off}")
    def qk(buf, c):
        S = SB[buf]
        a(f"v_mfma_f32_32x32x16_bf16 v[{S}:{S+15}], v[{KB[buf]}:{KB[buf]+3}], v[8:11], {c}")
    kread(0, 0)
    a("s_waitcnt lgkmcnt(0)")
    qk(0, "0")
    kread(1, 1024)
    a("s_mov_b32 s28, 0")
    a.label("K2_P1")
    for t in range(4):
        a("s_waitcnt lgkmcnt(0)")
        qk((t + 1) % 2, "0")
        kread(t % 2, (t + 2) * 1024)
        S = SB[t % 2]; m = 20 + (t % 2)
        for j in range(8):
            a(f"v_max3_f32 v{m}, v{m}, v{S+2*j}, v{S+2*j+1}")
    a("v_add_u32 v22, 4096, v22")
    a("s_add_u32 s28, s28, 4")
    a("s_cmp_lt_u32 s28, 64")
    a("s_cbranch_scc1 K2_P1")
    a("v_max_f32 v20, v20, v21")
    a("v_mov_b32 v21, v20")
    a("v_permlane32_swap_b32 v20, v21")
    a("v_max_f32 v20, v20, v21")
    a("v_sub_f32 v20, 0, v20")
    for r in range(16): a(f"v_mov_b32 v{CB+r}, v20")
    for r in range(16): a(f"v_mov_b32 v{OACC+r}, 0")
    stamp(a, 2)
    a("s_waitcnt vmcnt(6)")
    a("s_barrier")
    Cs = f"v[{CB}:{CB+15}]"
    a("v_mov_b32 v22, v3")
    a("v_mov_b32 v23, v6")
    def vread(buf, off):
        a("s_mov_b64 exec, s[30:31]")
        a(f"ds_read_b128 v[{VB[buf]}:{VB[buf]+3}], v23 offset:{off}")
        a(f"ds_read_b128 v[{VB[buf]+4}:{VB[buf]+7}], v23 offset:{off+512}")
        a("s_mov_b64 exec, -1")
    a("s_waitcnt lgkmcnt(0)")
    kread(0, 0)
    a("s_waitcnt lgkmcnt(0)")
    qk(0, Cs)
    kread(1, 1024)
    vread(0, 0)
    a("s_mov_b32 s28, 0")
    a.label("K2_P2")
    for t in range(2):
        S = SB[t]; V = VB[t]
        a("s_waitcnt lgkmcnt(0)")
        qk(1 - t, Cs)
        kread(t, (t + 2) * 1024)
        vread(1 - t, (t + 1) * 1024)
        for j in range(8):
            a(f"v_exp_f32 v{S+2*j}, v{S+2*j}")
            a(f"v_exp_f32 v{S+2*j+1}, v{S+2*j+1}")
            if j >= 1:
                a(f"v_cvt_pk_bf16_f32 v{P+j-1}, v{S+2*j-2}, v{S+2*j-1}")
            if j == 5:
                a(f"v_mfma_f32_32x32x16_bf16 v[{OACC}:{OACC+15}], v[{V}:{V+3}], v[{P}:{P+3}], v[{OACC}:{OACC+15}]")
        a(f"v_cvt_pk_bf16_f32 v{P+7}, v{S+14}, v{S+15}")
        a(f"v_mfma_f32_32x32x16_bf16 v[{OACC}:{OACC+15}], v[{V+4}:{V+7}], v[{P+4}:{P+7}], v[{OACC}:{OACC+15}]")
    a("v_add_u32 v22, 2048, v22")
    a("v_add_u32 v23, 2048, v23")
    a("s_add_u32 s28, s28, 2")
    a("s_cmp_lt_u32 s28, 64")
    a("s_cbranch_scc1 K2_P2")
    stamp(a, 3)
    a(f"v_mov_b32 v20, v{OACC+8}")
    a(f"v_mov_b32 v21, v{OACC+8}")
    a("v_permlane32_swap_b32 v20, v21")
    a("v_rcp_f32 v21, v20")
    for r in range(8):
        a(f"v_mul_f32 v26, v{OACC+r}, v21")
        a(f"v_fma_f32 v27, -v26, v20, v{OACC+r}")
        a(f"v_fma_f32 v{OACC+r}, v27, v21, v26")
    for j in range(4):
        a(f"v_cvt_pk_bf16_f32 v{28+j}, v{OACC+2*j}, v{OACC+2*j+1}")
    a("s_lshl_b32 s23, s22, 15")
    a("s_lshl_b32 s29, s14, 10")
    a("s_add_u32 s23, s23, s29")
    a(f"s_add_u32 s23, s23, {WS_O}")
    a("buffer_store_dwordx4 v[28:31], v3, s[24:27], s23 offen")
    rt_end(a, 5, wg=0, wave=0, kidx=1)
    a("s_branch K2_END")
    a.label("K2_DOWN")
    a("s_sub_u32 s17, s16, 8")
    a("s_and_b32 s19, s2, 7")
    a("s_lshl_b32 s19, s19, 2")
    a("s_bfe_u32 s20, s2, 0x20003")
    a("s_add_u32 s19, s19, s20")
    a("s_lshr_b32 s20, s2, 5")
    srd(a, 28, 6, 1376 * 1024)
    srd(a, 32, 12, H_BYTES, WS_H)
    srd(a, 36, 4, 2048 * 1024)
    a("v_bfe_u32 v7, v2, 3, 2")
    a("v_bfe_u32 v8, v2, 5, 1")
    a("v_lshl_add_u32 v7, v8, 3, v7")
    a("v_lshlrev_b32 v12, 10, v7")
    a("v_bfe_u32 v7, v2, 2, 1")
    a("v_bfe_u32 v8, v2, 4, 1")
    a("v_xor_b32 v7, v7, v8")
    a("v_lshl_add_u32 v12, v7, 6, v12")
    a("v_and_b32 v8, 3, v2")
    a("v_lshl_add_u32 v12, v8, 4, v12")
    a("s_lshl_b32 s21, s20, 7")
    a("v_add_u32 v12, s21, v12")
    a("v_add_u32 v13, 4096, v12")
    a("v_and_b32 v5, 15, v2")
    a("v_lshrrev_b32 v4, 5, v2")
    a("v_lshrrev_b32 v7, 2, v5")
    a("v_lshl_add_u32 v11, v4, 3, v7")
    a("v_lshlrev_b32 v11, 7, v11")
    a("v_bfe_u32 v7, v2, 3, 1")
    a("v_lshl_add_u32 v11, v7, 6, v11")
    a("v_and_b32 v7, 3, v5")
    a("v_lshl_add_u32 v11, v7, 3, v11")
    a("v_bfe_u32 v7, v2, 4, 1")
    a("v_lshl_add_u32 v11, v7, 5, v11")
    a(f"s_mul_i32 s22, s17, {D_NST*2048}")
    a(f"s_add_u32 s22, s22, {K2_DRING}")
    a("v_add_u32 v11, s22, v11")
    a("v_xor_b32 v10, 64, v11")
    a(f"v_add_u32 v14, {86*1024}, v3")
    a(f"s_mul_i32 s23, s19, {2*86*1024}")
    a(f"s_mul_i32 s40, s17, {22*16384}")
    a(f"s_mul_i32 s41, s17, {22*1024}")
    a("s_add_u32 s41, s41, s23")
    a(f"s_add_u32 s30, s40, {22*16384}")
    a(f"s_min_u32 s30, s30, {1376*1024}")
    DACC = 64; AOP = 16; WB = [40, 48]
    for r in range(64): a(f"v_mov_b32 v{DACC+r}, 0")
    def dissue(st):
        a(f"s_add_u32 m0, s22, {st*2048}")
        a("buffer_load_dwordx4 v12, s[28:31], s40 offen lds")
        a(f"s_add_u32 m0, s22, {st*2048+1024}")
        a("buffer_load_dwordx4 v13, s[28:31], s40 offen lds")
        a(f"buffer_load_dwordx4 v[{AOP+8*st}:{AOP+8*st+3}], v3, s[32:35], s41 offen")
        a(f"buffer_load_dwordx4 v[{AOP+8*st+4}:{AOP+8*st+7}], v14, s[32:35], s41 offen")
        a("s_add_u32 s40, s40, 16384")
        a("s_add_u32 s41, s41, 1024")
    for st in range(D_NST - 1): dissue(st)
    a("s_barrier")
    a("s_barrier")
    a(f"s_setprio {DPRIO}")
    def wreads(st, buf):
        for u in range(2):
            ad = 11 if u == 0 else 10
            b = WB[buf] + 4 * u
            a(f"ds_read_b64_tr_b16 v[{b}:{b+1}], v{ad} offset:{st*2048}")
            a(f"ds_read_b64_tr_b16 v[{b+2}:{b+3}], v{ad} offset:{st*2048+512}")
    a(f"s_waitcnt vmcnt({4*(D_NST-2)})")
    wreads(0, 0)
    a("s_mov_b32 s42, 0")
    a.label("K2_DL")
    for i in range(2 * D_NST):
        st = i % D_NST
        dissue((st + D_NST - 1) % D_NST)
        a(f"s_waitcnt vmcnt({4*(D_NST-2)}) lgkmcnt(0)")
        wreads((st + 1) % D_NST, (i + 1) % 2)
        for rt in range(2):
            for u in range(2):
                d = DACC + 16 * (2 * rt + u); b = WB[i % 2] + 4 * u; ao = AOP + 8 * st + 4 * rt
                a(f"v_mfma_f32_32x32x16_bf16 v[{d}:{d+15}], v[{b}:{b+3}], v[{ao}:{ao+3}], v[{d}:{d+15}]")
    a(f"s_add_u32 s42, s42, {2*D_NST}")
    a("s_cmp_lt_u32 s42, 22")
    a("s_cbranch_scc1 K2_DL")
    a("s_cmp_lg_u32 s17, 0")
    a("s_cbranch_scc1 K2_DST")
    a("v_and_b32 v4, 31, v2")
    a("v_lshrrev_b32 v5, 5, v2")
    a("s_lshl_b32 s48, s19, 6")
    a("v_add_u32 v6, s48, v4")
    a("v_lshlrev_b32 v6, 10, v6")
    a("v_lshl_add_u32 v6, v5, 3, v6")
    a("v_add_u32 v6, s21, v6")
    for rt in range(2):
        a(f"s_mov_b32 s49, {rt*32768}")
        for q in range(8):
            a(f"buffer_load_dwordx2 v[{16+2*q}:{17+2*q}], v6, s[36:39], s49 offen offset:{16*q}")
        a("s_waitcnt vmcnt(0)")
        for u in range(2):
            for q in range(4):
                d = DACC + 16 * (2 * rt + u) + 4 * q; xr = 16 + 2 * (4 * u + q)
                for p in range(2):
                    a(f"v_lshlrev_b32 v44, 16, v{xr+p}")
                    a(f"v_and_b32 v45, 0xffff0000, v{xr+p}")
                    a(f"v_add_f32 v{d+2*p}, v{d+2*p}, v44")
                    a(f"v_add_f32 v{d+2*p+1}, v{d+2*p+1}, v45")
    a.label("K2_DST")
    a("s_lshl_b32 s23, s19, 16")
    a("s_lshl_b32 s48, s20, 12")
    a("s_add_u32 s23, s23, s48")
    a("s_lshl_b32 s48, s17, 21")
    a("s_add_u32 s23, s23, s48")
    a(f"s_add_u32 s23, s23, {WS_P}")
    for rt in range(2):
        for u in range(2):
            d = DACC + 16 * (2 * rt + u)
            for j in range(8):
                a(f"v_cvt_pk_bf16_f32 v{16+j}, v{d+2*j}, v{d+2*j+1}")
            a(f"buffer_store_dwordx4 v[16:19], v3, s[24:27], s23 offen")
            a(f"buffer_store_dwordx4 v[20:23], v3, s[24:27], s23 offen offset:1024")
            a(f"s_add_u32 s23, s23, {2048 if u == 0 else 32768 - 2048}")
    rt_end(a, 2, wg=0, wave=8, base=8, kidx=1)
    a.label("K2_END")
    a("s_endpgm")
    return a.finalize(), 128, 102

K3_LDS = 131072
def gen_k3():
    a = Asm()
    a("s_cmp_ge_u32 s2, 256")
    a("s_cbranch_scc1 K3_END")
    rt_start(a)
    stamp(a, 0)
    a("s_load_dwordx2 s[6:7], s[0:1], 16")
    a("s_load_dwordx2 s[10:11], s[0:1], 56")
    a("s_load_dwordx2 s[12:13], s[0:1], 72")
    a("v_lshrrev_b32 v1, 6, v0")
    a("v_readfirstlane_b32 s16, v1")
    a("v_and_b32 v2, 63, v0")
    a("s_and_b32 s14, s2, 7")
    a("s_lshl_b32 s14, s14, 2")
    a("s_bfe_u32 s15, s2, 0x20003")
    a("s_add_u32 s14, s14, s15")
    a("s_lshr_b32 s15, s2, 5")
    a("s_lshr_b32 s17, s16, 1")
    a("s_and_b32 s18, s16, 1")
    a("s_waitcnt lgkmcnt(0)")
    srd(a, 32, 10, 2048 * 1024)
    srd(a, 24, 12, 0x10000000)
    srd(a, 28, 6, 512 * 1024)
    a("v_lshlrev_b32 v3, 4, v2")
    a("s_lshl_b32 s19, s14, 1")
    a("s_add_u32 s19, s19, s17")
    a("s_lshl_b32 s21, s19, 4")
    a("s_lshl_b32 s22, s15, 1")
    a("s_add_u32 s22, s22, s18")
    a("s_add_u32 s21, s21, s22")
    a("s_lshl_b32 s21, s21, 11")
    a(f"s_add_u32 s21, s21, {WS_P}")
    ACC = 64
    for pq in range(4):
        a(f"buffer_load_dwordx4 v[{80+8*pq}:{83+8*pq}], v3, s[24:27], s21 offen")
        a(f"buffer_load_dwordx4 v[{84+8*pq}:{87+8*pq}], v3, s[24:27], s21 offen offset:1024")
        a(f"s_add_u32 s21, s21, {2 << 20}")
    a("s_lshl_b32 s23, s19, 15")
    a("s_lshl_b32 s40, s18, 14")
    a("s_add_u32 s23, s23, s40")
    a(f"s_add_u32 s23, s23, {WS_O}")
    a("s_lshl_b32 s41, s16, 14")
    perm_row(a, 12, 7, 8)
    a("v_lshlrev_b32 v12, 10, v12")
    a("v_and_b32 v8, 3, v2")
    a("v_lshl_add_u32 v12, v8, 4, v12")
    a("s_lshl_b32 s42, s22, 6")
    a("v_add_u32 v12, s42, v12")
    a("s_lshl_b32 s43, s17, 18")
    a("s_lshl_b32 s44, s18, 15")
    a("s_lshl_b32 s45, s17, 14")
    a("s_add_u32 s44, s44, s45")
    a("s_add_u32 s44, s44, 65536")
    a("s_mov_b32 s46, 0")
    a.label("K3_DMA")
    a("s_mov_b32 m0, s41")
    a("buffer_load_dwordx4 v3, s[24:27], s23 offen lds")
    a("s_mov_b32 m0, s44")
    a("buffer_load_dwordx4 v12, s[28:31], s43 offen lds")
    a("s_add_u32 s23, s23, 1024")
    a("s_add_u32 s41, s41, 1024")
    a("s_add_u32 s43, s43, 16384")
    a("s_add_u32 s44, s44, 1024")
    a("s_add_u32 s46, s46, 1")
    a("s_cmp_lt_u32 s46, 16")
    a("s_cbranch_scc1 K3_DMA")
    a("s_lshl_b32 s47, s17, 15")
    a("v_add_u32 v10, s47, v3")
    tr_addr(a, 11, 7, 8)
    a("s_lshl_b32 s47, s18, 15")
    a("s_add_u32 s47, s47, 65536")
    a("v_add_u32 v11, s47, v11")
    a("s_waitcnt vmcnt(0)")
    for j in range(8):
        a(f"v_lshlrev_b32 v{ACC+2*j}, 16, v{80+j}")
        a(f"v_and_b32 v{ACC+2*j+1}, 0xffff0000, v{80+j}")
        for pq in range(1, 4):
            a(f"v_lshlrev_b32 v40, 16, v{80+8*pq+j}")
            a(f"v_and_b32 v41, 0xffff0000, v{80+8*pq+j}")
            a(f"v_add_f32 v{ACC+2*j}, v{ACC+2*j}, v40")
            a(f"v_add_f32 v{ACC+2*j+1}, v{ACC+2*j+1}, v41")
    a("s_barrier")
    stamp(a, 1)
    OP = [16, 24]
    def reads(buf, off):
        b = OP[buf]
        a(f"ds_read_b128 v[{b}:{b+3}], v10 offset:{off}")
        a(f"ds_read_b64_tr_b16 v[{b+4}:{b+5}], v11 offset:{off}")
        a(f"ds_read_b64_tr_b16 v[{b+6}:{b+7}], v11 offset:{off+256}")
    reads(0, 0)
    a("s_mov_b32 s46, 0")
    a.label("K3_L")
    for s in range(4):
        b = OP[s % 2]
        reads((s + 1) % 2, (s + 1) * 1024)
        a("s_waitcnt lgkmcnt(3)")
        a(f"v_mfma_f32_32x32x16_bf16 v[{ACC}:{ACC+15}], v[{b+4}:{b+7}], v[{b}:{b+3}], v[{ACC}:{ACC+15}]")
    a("v_add_u32 v10, 4096, v10")
    a("v_add_u32 v11, 4096, v11")
    a("s_add_u32 s46, s46, 4")
    a("s_cmp_lt_u32 s46, 32")
    a("s_cbranch_scc1 K3_L")
    a("v_and_b32 v4, 31, v2")
    a("v_lshrrev_b32 v5, 5, v2")
    a("s_lshl_b32 s47, s19, 5")
    a("v_add_u32 v6, s47, v4")
    a("v_lshlrev_b32 v6, 10, v6")
    a("v_lshl_add_u32 v6, v5, 3, v6")
    a("v_add_u32 v6, s42, v6")
    for q in range(4):
        a(f"v_cvt_pk_bf16_f32 v{32+2*q}, v{ACC+4*q}, v{ACC+4*q+1}")
        a(f"v_cvt_pk_bf16_f32 v{33+2*q}, v{ACC+4*q+2}, v{ACC+4*q+3}")
        a(f"buffer_store_dwordx2 v[{32+2*q}:{33+2*q}], v6, s[32:35], 0 offen offset:{16*q}")
    rt_end(a, 3, wg=0, wave=0, kidx=2)
    a.label("K3_END")
    a("s_endpgm")
    return a.finalize(), 128, 102

def desc(name, nv, ns):
    return f""".amdhsa_kernel {name}
  .amdhsa_next_free_vgpr {nv}
  .amdhsa_next_free_sgpr {ns}
  .amdhsa_accum_offset {nv}
  .amdhsa_group_segment_fixed_size 0
  .amdhsa_kernarg_size 80
  .amdhsa_user_sgpr_count 2
  .amdhsa_user_sgpr_kernarg_segment_ptr 1
  .amdhsa_system_sgpr_workgroup_id_x 1
.end_amdhsa_kernel"""

def build(path):
    ks = [("k0_kernel", gen_k0(), 128, 256, 0), ("k1_kernel", gen_k1(), 256, 576, K1_LDS), ("k2_kernel", gen_k2(), 256, 768, K2_LDS), ("k3_kernel", gen_k3(), 256, 256, K3_LDS + 1024)]
    out = []
    for n, _, g, b, l in ks:
        out.append(f"; @launch kernel={n} grid=({g},1,1) block=({b},1,1) lds={l}")
    out += ['.amdgcn_target "amdgcn-amd-amdhsa--gfx950"', ".text"]
    for n, (txt, nv, ns), *_ in ks:
        out += [f".globl {n}", ".p2align 8", f".type {n},@function", f"{n}:", txt]
    out.append('.section .rodata,"a"')
    for n, (txt, nv, ns), *_ in ks:
        out += [".p2align 6", desc(n, nv, ns)]
    open(path, "w").write("\n".join(out) + "\n")

if __name__ == "__main__":
    if "stamp" in sys.argv: STAMP = True
    for x in sys.argv:
        if x.startswith("dprio="): DPRIO = int(x[6:])
        if x.startswith("yprio="): YPRIO = int(x[6:])
    build(sys.argv[1])
```

```python
import sys, struct
sys.path.insert(0, "work")
from asmgen import Asm

WS_Q = 0
WS_K = 2 << 20
WS_V = 4 << 20
WS_H = 6 << 20
WS_O = 12 << 20
WS_P = 16 << 20
H_BYTES = 64 * 86 * 1024
C_SCALE = 0.25 * 1.4426950408889634
STAMP = False
DPRIO = 2
YPRIO = 0
_uid = 0

def f32hex(x): return "0x%08x" % struct.unpack("<I", struct.pack("<f", x))[0]

def srd(a, d, ptr_lo, nbytes, off=0):
    if off:
        a(f"s_add_u32 s{d}, s{ptr_lo}, {off}")
        a(f"s_addc_u32 s{d+1}, s{ptr_lo+1}, 0")
        a(f"s_and_b32 s{d+1}, s{d+1}, 0xffff")
    else:
        a(f"s_mov_b32 s{d}, s{ptr_lo}")
        a(f"s_and_b32 s{d+1}, s{ptr_lo+1}, 0xffff")
    a(f"s_mov_b32 s{d+2}, {nbytes}")
    a(f"s_mov_b32 s{d+3}, 0x20000")

def bf16r(a, dst, src):
    a(f"v_cvt_pk_bf16_f32 v{dst}, v{src}, v{src}")
    a(f"v_lshlrev_b32 v{dst}, 16, v{dst}")

def stamp(a, i):
    if not STAMP: return
    a("s_memtime s[90:91]")
    a("s_waitcnt lgkmcnt(0)")
    a(f"s_mov_b32 s{70+i}, s90")

def dbg_srd(a):
    a("s_load_dwordx2 s[92:93], s[0:1], 64")
    a("s_waitcnt lgkmcnt(0)")
    a("s_mov_b32 s96, s92")
    a("s_and_b32 s97, s93, 0xffff")
    a("s_mov_b32 s98, 256")
    a("s_mov_b32 s99, 0x20000")

WS_DBG = 40 << 20
def rt_start(a):
    if not STAMP: return
    dbg_srd(a)
    a("s_memrealtime s[90:91]")
    a("s_waitcnt lgkmcnt(0)")
    a("s_mov_b32 s88, s90")

def rt_end(a, n, wave_sreg=16, wg=0, wave=0, base=0, kidx=0):
    if not STAMP: return
    global _uid
    a("s_waitcnt vmcnt(0) lgkmcnt(0)")
    stamp(a, n - 1)
    a("s_memrealtime s[90:91]")
    a("s_waitcnt lgkmcnt(0)")
    a("v_and_b32 v2, 63, v0")
    a("v_cmp_eq_u32 vcc, 0, v2")
    a("s_and_saveexec_b64 s[94:95], vcc")
    a("s_lshl_b32 s89, s2, 4")
    a(f"s_add_u32 s89, s89, s{wave_sreg}")
    a("s_lshl_b32 s89, s89, 3")
    a(f"s_add_u32 s89, s89, {WS_DBG + kidx*65536}")
    a("v_mov_b32 v4, s88")
    a("v_mov_b32 v5, s90")
    a("buffer_store_dwordx2 v[4:5], v2, s[24:27], s89 offen")
    _uid += 1
    lab = f"STF_{_uid}"
    a(f"s_cmp_lg_u32 s2, {wg}")
    a(f"s_cbranch_scc1 {lab}")
    a(f"s_cmp_lg_u32 s{wave_sreg}, {wave}")
    a(f"s_cbranch_scc1 {lab}")
    for i in range(1, n):
        a(f"s_sub_u32 s90, s{70+i}, s70")
        a("v_mov_b32 v1, s90")
        a(f"buffer_store_dword v1, v2, s[96:99], 0 offen offset:{4*(base+i)}")
    a.label(lab)
    a("s_waitcnt vmcnt(0)")

def tr_addr(a, dst, t0, t1, lane=2):
    a(f"v_and_b32 v{t0}, 15, v{lane}")
    a(f"v_lshrrev_b32 v{dst}, 2, v{t0}")
    a(f"v_lshrrev_b32 v{t1}, 5, v{lane}")
    a(f"v_lshl_add_u32 v{dst}, v{t1}, 3, v{dst}")
    a(f"v_lshlrev_b32 v{dst}, 6, v{dst}")
    a(f"v_and_b32 v{t0}, 3, v{t0}")
    a(f"v_lshlrev_b32 v{t0}, 3, v{t0}")
    a(f"v_bfe_u32 v{t1}, v{lane}, 4, 1")
    a(f"v_lshl_add_u32 v{t0}, v{t1}, 5, v{t0}")
    a(f"v_add_u32 v{dst}, v{dst}, v{t0}")

def perm_row(a, dst, t0, t1, lane=2):
    a(f"v_lshrrev_b32 v{t0}, 2, v{lane}")
    a(f"v_and_b32 v{dst}, 3, v{t0}")
    a(f"v_bfe_u32 v{t1}, v{t0}, 3, 1")
    a(f"v_lshl_add_u32 v{dst}, v{t1}, 2, v{dst}")
    a(f"v_bfe_u32 v{t1}, v{t0}, 2, 1")
    a(f"v_lshl_add_u32 v{dst}, v{t1}, 3, v{dst}")

WS_XN = 32 << 20
def gen_k0():
    a = Asm()
    a("s_cmp_ge_u32 s2, 128")
    a("s_cbranch_scc1 K0_END")
    rt_start(a)
    stamp(a, 0)
    a("s_load_dwordx2 s[4:5], s[0:1], 0")
    a("s_load_dwordx2 s[12:13], s[0:1], 72")
    a("v_lshrrev_b32 v1, 6, v0")
    a("v_readfirstlane_b32 s16, v1")
    a("v_and_b32 v2, 63, v0")
    a("s_waitcnt lgkmcnt(0)")
    srd(a, 20, 4, 2048 * 1024)
    srd(a, 24, 12, 0x10000000)
    a("v_lshrrev_b32 v3, 4, v2")
    a("v_and_b32 v4, 15, v2")
    a("s_lshl_b32 s17, s2, 4")
    a("s_lshl_b32 s18, s16, 2")
    a("s_add_u32 s17, s17, s18")
    a("v_add_u32 v5, s17, v3")
    a("v_lshlrev_b32 v6, 10, v5")
    a("v_lshl_add_u32 v6, v4, 4, v6")
    X = 8; U = 32
    for c in range(4):
        a(f"buffer_load_dwordx4 v[{X+4*c}:{X+4*c+3}], v6, s[20:23], 0 offen offset:{256*c}")
    a("s_load_dwordx2 s[6:7], s[0:1], 8")
    a("s_load_dwordx4 s[8:11], s[0:1], 32")
    a("s_and_b32 s30, s2, 7")
    a("s_lshr_b32 s31, s2, 3")
    a("s_lshl_b32 s31, s31, 2")
    a("s_add_u32 s31, s31, s16")
    a("v_lshrrev_b32 v75, 3, v2")
    a("s_lshl_b32 s31, s31, 3")
    a("v_add_u32 v75, s31, v75")
    a("v_and_b32 v76, 7, v2")
    a("s_waitcnt lgkmcnt(0)")
    a("s_cmp_lt_u32 s30, 3")
    a("s_cbranch_scc0 K0_WF")
    srd(a, 32, 6, 512 * 3072)
    a("v_mul_u32_u24 v77, 3072, v75")
    a("v_lshl_add_u32 v77, v76, 7, v77")
    a("s_lshl_b32 s31, s30, 10")
    a("buffer_load_dword v78, v77, s[32:35], s31 offen")
    a("buffer_load_dword v78, v77, s[32:35], s31 offen")
    a("s_branch K0_WD")
    a.label("K0_WF")
    srd(a, 32, 8, 512 * 2752)
    srd(a, 36, 10, 512 * 2752)
    a("v_mul_u32_u24 v77, 2752, v75")
    a("v_and_b32 v79, 3, v76")
    a("v_lshl_add_u32 v77, v79, 7, v77")
    a("s_sub_u32 s31, s30, 3")
    a("s_lshl_b32 s31, s31, 9")
    a("v_cmp_gt_u32 vcc, 4, v76")
    a("s_and_saveexec_b64 s[40:41], vcc")
    a("buffer_load_dword v78, v77, s[32:35], s31 offen")
    a("s_andn2_b64 exec, s[40:41], exec")
    a("buffer_load_dword v78, v77, s[36:39], s31 offen")
    a("s_mov_b64 exec, s[40:41]")
    a.label("K0_WD")
    srd(a, 32, 8, 512 * 2752)
    srd(a, 36, 10, 512 * 2752)
    a("v_and_b32 v79, 7, v2")
    a("s_lshr_b32 s31, s2, 3")
    a("s_lshl_b32 s31, s31, 2")
    a("s_add_u32 s31, s31, s16")
    a("s_lshl_b32 s31, s31, 3")
    a("v_add_u32 v79, s31, v79")
    a("v_mul_u32_u24 v77, 2752, v79")
    a("v_bfe_u32 v79, v2, 3, 1")
    a("v_lshl_add_u32 v77, v79, 7, v77")
    a("v_add_u32 v77, 2560, v77")
    a("buffer_load_dword v78, v77, s[32:35], 0 offen")
    a("buffer_load_dword v78, v77, s[36:39], 0 offen")
    a("v_lshrrev_b32 v7, 5, v5")
    a("v_lshlrev_b32 v7, 15, v7")
    a("v_lshrrev_b32 v66, 1, v4")
    a("v_lshl_add_u32 v7, v66, 10, v7")
    a("v_and_b32 v66, 1, v4")
    a("v_lshl_add_u32 v7, v66, 9, v7")
    a("v_and_b32 v66, 31, v5")
    a("v_lshl_add_u32 v7, v66, 4, v7")
    a("s_waitcnt vmcnt(4)")
    def red16(r, t):
        for ctl in ("quad_perm:[1,0,3,2]", "quad_perm:[2,3,0,1]", "row_half_mirror", "row_mirror"):
            a(f"v_add_f32_dpp v{t}, v{r}, v{r} {ctl} row_mask:0xf bank_mask:0xf")
            a(f"v_mov_b32 v{r}, v{t}")
    for d in range(16):
        a(f"v_lshlrev_b32 v{U+2*d}, 16, v{X+d}")
        a(f"v_and_b32 v{U+2*d+1}, 0xffff0000, v{X+d}")
    a(f"v_add_f32 v67, v{U}, v{U+1}")
    a(f"v_add_f32 v68, v{U+2}, v{U+3}")
    for j in range(4, 32, 2):
        a(f"v_add_f32 v67, v67, v{U+j}")
        a(f"v_add_f32 v68, v68, v{U+j+1}")
    a("v_add_f32 v67, v67, v68")
    red16(67, 68)
    a(f"v_mul_f32 v67, {f32hex(1/512)}, v67")
    a(f"v_sub_f32 v69, v{U}, v67")
    a("v_mul_f32 v70, v69, v69")
    a(f"v_sub_f32 v71, v{U+1}, v67")
    a("v_mul_f32 v72, v71, v71")
    for j in range(2, 32, 2):
        a(f"v_sub_f32 v69, v{U+j}, v67")
        a("v_fmac_f32 v70, v69, v69")
        a(f"v_sub_f32 v71, v{U+j+1}, v67")
        a("v_fmac_f32 v72, v71, v71")
    a("v_add_f32 v70, v70, v72")
    red16(70, 68)
    a(f"v_mul_f32 v70, {f32hex(1/512)}, v70")
    bf16r(a, 67, 67)
    bf16r(a, 70, 70)
    a(f"v_add_f32 v70, {f32hex(1e-5)}, v70")
    bf16r(a, 70, 70)
    a("v_sqrt_f32 v70, v70")
    bf16r(a, 70, 70)
    a("v_rcp_f32 v71, v70")
    for d in range(16):
        for h in range(2):
            r = U + 2 * d + h
            a(f"v_sub_f32 v{r}, v{r}, v67")
        a(f"v_cvt_pk_bf16_f32 v72, v{U+2*d}, v{U+2*d+1}")
        a(f"v_lshlrev_b32 v{U+2*d}, 16, v72")
        a(f"v_and_b32 v{U+2*d+1}, 0xffff0000, v72")
        for h in range(2):
            r = U + 2 * d + h
            a(f"v_mul_f32 v73, v{r}, v71")
            a(f"v_fma_f32 v74, -v73, v70, v{r}")
            a(f"v_fma_f32 v{r}, v74, v71, v73")
        a(f"v_cvt_pk_bf16_f32 v{X+d}, v{U+2*d}, v{U+2*d+1}")
    for c in range(4):
        a(f"s_mov_b32 s19, {WS_XN + 8192*c}")
        a(f"buffer_store_dwordx4 v[{X+4*c}:{X+4*c+3}], v7, s[24:27], s19 offen")
    rt_end(a, 2, wg=0, wave=0, kidx=3)
    a.label("K0_END")
    a("s_endpgm")
    return a.finalize(), 80, 102

K1_NS = 8
K1_SS = 14336
K1_LDS = K1_NS * K1_SS

def gen_k1():
    a = Asm()
    a("s_cmp_ge_u32 s2, 256")
    a("s_cbranch_scc1 K1_END")
    rt_start(a)
    stamp(a, 0)
    a("s_load_dwordx2 s[6:7], s[0:1], 8")
    a("s_load_dwordx4 s[8:11], s[0:1], 32")
    a("s_load_dwordx2 s[12:13], s[0:1], 72")
    a("s_lshr_b32 s14, s2, 4")
    a("s_and_b32 s15, s2, 7")
    a("s_lshl_b32 s15, s15, 1")
    a("s_bfe_u32 s17, s2, 0x10003")
    a("s_add_u32 s15, s15, s17")
    a("v_lshrrev_b32 v1, 6, v0")
    a("v_readfirstlane_b32 s16, v1")
    a("v_and_b32 v2, 63, v0")
    a("s_waitcnt lgkmcnt(0)")
    srd(a, 24, 12, 0x10000000)
    srd(a, 48, 8, 512 * 2752)
    srd(a, 52, 10, 512 * 2752)
    a("v_lshlrev_b32 v6, 4, v2")
    a("v_and_b32 v3, 31, v2")
    a("v_lshrrev_b32 v4, 5, v2")
    a("v_and_b32 v5, 15, v2")
    a(f"s_mov_b32 s46, {f32hex(-1.4426950408889634)}")
    ACC = 64; XA = [16, 32]
    a("s_cmp_eq_u32 s16, 8")
    a("s_cbranch_scc1 K1_MINI")
    a("s_lshr_b32 s19, s16, 2")
    a("s_and_b32 s21, s16, 3")
    a("s_cmp_lt_u32 s15, 6")
    a("s_cbranch_scc0 K1_FFN")
    srd(a, 28, 6, 512 * 3072)
    a("s_mov_b32 s36, 3072")
    a("s_lshl_b32 s37, s15, 9")
    a("s_lshl_b32 s38, s19, 8")
    a("s_add_u32 s37, s37, s38")
    a("s_branch K1_SEL")
    a.label("K1_FFN")
    a("s_cmp_eq_u32 s19, 0")
    a("s_cselect_b32 s28, s48, s52")
    a("s_cselect_b32 s29, s49, s53")
    a(f"s_mov_b32 s30, {512*2752}")
    a("s_mov_b32 s31, 0x20000")
    a("s_mov_b32 s36, 2752")
    a("s_sub_u32 s37, s15, 6")
    a("s_lshl_b32 s37, s37, 8")
    a.label("K1_SEL")
    a("v_lshrrev_b32 v7, 4, v2")
    a("v_bfe_u32 v8, v2, 2, 2")
    a("v_xor_b32 v8, v8, v7")
    a("v_lshlrev_b32 v8, 6, v8")
    a("v_and_b32 v9, 3, v2")
    a("v_lshl_add_u32 v8, v9, 4, v8")
    a("s_lshl_b32 s38, s21, 2")
    a("v_add_u32 v7, s38, v7")
    a("v_mul_lo_u32 v12, v7, s36")
    a("v_add_u32 v12, v12, v8")
    a("v_add_u32 v12, s37, v12")
    a("s_lshl_b32 s39, s36, 4")
    a("s_lshl_b32 s18, s16, 10")
    a("s_lshl_b32 s41, s14, 2")
    a("s_add_u32 s41, s41, s21")
    a("s_lshl_b32 s41, s41, 15")
    a("s_lshl_b32 s42, s19, 10")
    a("s_add_u32 s41, s41, s42")
    a(f"s_add_u32 s41, s41, {WS_XN}")
    a("s_lshl_b32 s43, s21, 10")
    a("s_add_u32 s43, s43, 8192")
    a("s_mov_b32 s40, 0")
    def issue(st):
        a(f"s_add_u32 m0, s18, {st*K1_SS}")
        a("buffer_load_dwordx4 v12, s[28:31], s40 offen lds")
        a("s_add_u32 s40, s40, s39")
        if st % 2 == 0:
            a(f"s_mul_i32 s44, s19, {K1_SS}")
            a("s_add_u32 s44, s44, s43")
            a(f"s_add_u32 m0, s44, {st*K1_SS}")
            a("buffer_load_dwordx4 v6, s[24:27], s41 offen lds")
            a("s_add_u32 s41, s41, 2048")
    for st in range(K1_NS - 2): issue(st)
    a("s_lshl_b32 s45, s19, 11")
    a("s_add_u32 s45, s45, 8192")
    a("v_add_u32 v10, s45, v6")
    a("v_lshrrev_b32 v7, 2, v5")
    a("v_lshl_add_u32 v11, v4, 3, v7")
    a("v_lshlrev_b32 v11, 8, v11")
    a("v_xor_b32 v7, s21, v7")
    a("v_lshl_add_u32 v11, v7, 6, v11")
    a("v_and_b32 v7, 3, v5")
    a("v_lshl_add_u32 v11, v7, 3, v11")
    a("v_bfe_u32 v7, v2, 4, 1")
    a("v_lshl_add_u32 v11, v7, 5, v11")
    a(f"v_add_u32 v13, {4*K1_SS}, v10")
    a(f"v_add_u32 v14, {4*K1_SS}, v11")
    for r in range(64): a(f"v_mov_b32 v{ACC+r}, 0")
    a(f"s_waitcnt vmcnt({3*(K1_NS-2)//2 - 3})")
    a("s_barrier")
    stamp(a, 1)

    def loop(tag, vorient):
        def reads(st, base):
            ra, rw = (10, 11) if st < 4 else (13, 14)
            so = (st % 4) * K1_SS
            for rt in range(2):
                a(f"ds_read_b128 v[{base+4*rt}:{base+4*rt+3}], v{ra} offset:{so + rt*1024}")
            for u in range(2):
                o = so + u * 4096
                a(f"ds_read_b64_tr_b16 v[{base+8+4*u}:{base+9+4*u}], v{rw} offset:{o}")
                a(f"ds_read_b64_tr_b16 v[{base+10+4*u}:{base+11+4*u}], v{rw} offset:{o+1024}")
        reads(0, XA[0])
        a("s_mov_b32 s47, 0")
        a.label(f"K1_L{tag}")
        for s in range(K1_NS):
            cur = XA[s % 2]; nxt = XA[(s + 1) % 2]
            if s % 2 == 1:
                a("s_waitcnt lgkmcnt(0)")
                a(f"s_waitcnt vmcnt({3*(K1_NS-2)//2 - 6})")
                a("s_barrier")
                issue((s + K1_NS - 3) % K1_NS)
                issue((s + K1_NS - 2) % K1_NS)
            else:
                a("s_waitcnt lgkmcnt(0)")
            reads((s + 1) % K1_NS, nxt)
            for rt in range(2):
                for u in range(2):
                    d = ACC + 16 * (2 * rt + u)
                    xa = f"v[{cur+4*rt}:{cur+4*rt+3}]"; wa = f"v[{cur+8+4*u}:{cur+11+4*u}]"
                    A, B = (xa, wa) if vorient else (wa, xa)
                    a(f"v_mfma_f32_32x32x16_bf16 v[{d}:{d+15}], {A}, {B}, v[{d}:{d+15}]")
        a("s_add_u32 s47, s47, 1")
        a(f"s_cmp_lt_u32 s47, {32//K1_NS}")
        a(f"s_cbranch_scc1 K1_L{tag}")

    def wd_warm():
        a("s_load_dwordx2 s[56:57], s[0:1], 48")
        a("s_lshr_b32 s44, s2, 3")
        a("s_lshl_b32 s44, s44, 3")
        a("s_add_u32 s44, s44, s16")
        a(f"s_mul_i32 s44, s44, {43*128}")
        a("v_lshlrev_b32 v48, 7, v2")
        a("v_cmp_gt_u32 vcc, 43, v2")
        a("s_waitcnt lgkmcnt(0)")
        srd(a, 60, 56, 1376 * 1024)
        a("s_and_saveexec_b64 s[56:57], vcc")
        a("buffer_load_dword v49, v48, s[60:63], s44 offen")
        a("s_mov_b64 exec, s[56:57]")

    def h_epi(dg, du, soff):
        for ks in range(2):
            for p in range(4):
                r0 = 8 * ks + 2 * p
                a(f"v_cvt_pk_bf16_f32 v20, v{dg+r0}, v{dg+r0+1}")
                a(f"v_cvt_pk_bf16_f32 v21, v{du+r0}, v{du+r0+1}")
                a("v_lshlrev_b32 v22, 16, v20")
                a("v_and_b32 v23, 0xffff0000, v20")
                a("v_lshlrev_b32 v24, 16, v21")
                a("v_and_b32 v25, 0xffff0000, v21")
                for g in (22, 23):
                    a(f"v_mul_f32 v26, s46, v{g}")
                    a("v_exp_f32 v26, v26")
                    a("v_add_f32 v26, 1.0, v26")
                    a("v_rcp_f32 v26, v26")
                    a(f"v_mul_f32 v{g}, v{g}, v26")
                a("v_cvt_pk_bf16_f32 v20, v22, v23")
                a("v_lshlrev_b32 v22, 16, v20")
                a("v_and_b32 v23, 0xffff0000, v20")
                a("v_mul_f32 v22, v22, v24")
                a("v_mul_f32 v23, v23, v25")
                a(f"v_cvt_pk_bf16_f32 v{16+p}, v22, v23")
            a(f"s_mov_b32 s47, {soff + ks*1024}")
            a("buffer_store_dwordx4 v[16:19], v9, s[24:27], s47 offen")

    def h_addr():
        a(f"s_mul_i32 s45, s45, {86*1024}")
        a("s_lshl_b32 s43, s43, 11")
        a("s_add_u32 s43, s43, s45")
        a(f"s_add_u32 s43, s43, {WS_H}")
        a("v_add_u32 v9, s43, v6")

    a("s_lshl_b32 s42, s14, 2")
    a("s_lshl_b32 s43, s19, 1")
    a("s_add_u32 s42, s42, s43")
    a("s_cmp_ge_u32 s15, 4")
    a("s_cselect_b32 s58, 1, 0")
    a("s_cmp_lt_u32 s15, 6")
    a("s_cselect_b32 s59, 1, 0")
    a("s_and_b32 s58, s58, s59")
    a("s_lshl_b32 s43, s21, 10")
    a("s_add_u32 s43, s43, 8192")
    a("s_cmp_eq_u32 s58, 1")
    a("s_cbranch_scc1 K1_VLOOP")
    loop("T", False)
    stamp(a, 2)
    wd_warm()
    a("s_cmp_ge_u32 s15, 6")
    a("s_cbranch_scc1 K1_EPI_H")
    a("s_lshr_b32 s43, s15, 1")
    a("s_lshl_b32 s43, s43, 21")
    a("s_and_b32 s44, s15, 1")
    a("s_lshl_b32 s44, s44, 20")
    a("s_add_u32 s43, s43, s44")
    a("s_lshl_b32 s44, s21, 17")
    a("s_add_u32 s43, s43, s44")
    a("s_lshl_b32 s44, s42, 10")
    a("s_add_u32 s43, s43, s44")
    a("v_add_u32 v9, s43, v6")
    a("s_cmp_lt_u32 s15, 2")
    a(f"s_cselect_b32 s44, {f32hex(C_SCALE)}, 1.0")
    a("v_mov_b32 v28, s44")
    for rt in range(2):
        for u in range(2):
            d = ACC + 16 * (2 * rt + u)
            for hh in range(2):
                for j in range(8):
                    a(f"v_mul_f32 v{d+8*hh+j}, v{d+8*hh+j}, v28")
                for j in range(4):
                    a(f"v_cvt_pk_bf16_f32 v{16+j}, v{d+8*hh+2*j}, v{d+8*hh+2*j+1}")
                a(f"s_mov_b32 s45, {(8 * u + hh) * 65536 + rt * 1024}")
                a("buffer_store_dwordx4 v[16:19], v9, s[24:27], s45 offen")
    a("s_branch K1_FIN")
    a.label("K1_EPI_H")
    a("s_sub_u32 s43, s15, 6")
    a("s_lshl_b32 s43, s43, 2")
    a("s_add_u32 s43, s43, s21")
    a("s_mov_b32 s45, s42")
    h_addr()
    for rt in range(2):
        h_epi(ACC + 32 * rt, ACC + 32 * rt + 16, rt * 86 * 1024)
    a("s_branch K1_FIN")
    a.label("K1_VLOOP")
    loop("V", True)
    wd_warm()
    a("s_and_b32 s43, s15, 1")
    a("s_lshl_b32 s43, s43, 20")
    a("s_lshl_b32 s44, s21, 17")
    a("s_add_u32 s43, s43, s44")
    a(f"s_add_u32 s43, s43, {WS_V}")
    a("s_lshl_b32 s44, s42, 10")
    a("s_add_u32 s43, s43, s44")
    a("v_lshrrev_b32 v9, 4, v3")
    a("v_lshlrev_b32 v9, 16, v9")
    a("v_lshl_add_u32 v9, v4, 8, v9")
    a("v_lshl_add_u32 v9, v5, 4, v9")
    a("v_add_u32 v9, s43, v9")
    for rt in range(2):
        for u in range(2):
            d = ACC + 16 * (2 * rt + u)
            for g in range(2):
                for j in range(4):
                    a(f"v_cvt_pk_bf16_f32 v{16+j}, v{d+8*g+2*j}, v{d+8*g+2*j+1}")
                a(f"s_mov_b32 s45, {8 * u * 65536 + rt * 1024 + g * 512}")
                a("buffer_store_dwordx4 v[16:19], v9, s[24:27], s45 offen")
    a("s_branch K1_FIN")
    a.label("K1_MINI")
    a("s_lshr_b32 s62, s15, 2")
    a("s_add_u32 s62, s62, 40")
    a("s_and_b32 s63, s15, 3")
    a("s_cmp_ge_u32 s15, 12")
    a("s_cselect_b32 s50, 0, s50")
    a(f"s_cselect_b32 s54, 0, {512*2752}")
    a("s_cselect_b32 s50, 0, s54")
    a("v_lshrrev_b32 v7, 2, v2")
    a("s_mov_b32 s56, 2752")
    a("v_mul_lo_u32 v15, v7, s56")
    a("v_and_b32 v8, 3, v2")
    a("v_lshl_add_u32 v15, v8, 4, v15")
    a("s_lshl_b32 s57, s62, 6")
    a("v_add_u32 v15, s57, v15")
    a("s_mov_b32 s40, 0")
    def missue(st):
        a(f"s_mov_b32 m0, {st*K1_SS + 12288}")
        a("buffer_load_dwordx4 v15, s[48:51], s40 offen lds")
        a(f"s_mov_b32 m0, {st*K1_SS + 13312}")
        a("buffer_load_dwordx4 v15, s[52:55], s40 offen lds")
        a(f"s_add_u32 s40, s40, {2752*16}")
    for st in range(K1_NS - 2): missue(st)
    tr_addr(a, 11, 7, 8)
    a("v_add_u32 v11, 12288, v11")
    a("s_lshl_b32 s45, s63, 10")
    a("s_add_u32 s45, s45, 8192")
    a("v_add_u32 v10, s45, v6")
    a(f"v_add_u32 v13, {4*K1_SS}, v10")
    a(f"v_add_u32 v14, {4*K1_SS}, v11")
    for r in range(32): a(f"v_mov_b32 v{ACC+r}, 0")
    a(f"s_waitcnt vmcnt({2*(K1_NS-2) - 4})")
    a("s_barrier")
    def mreads(st, base):
        ra, rw = (10, 11) if st < 4 else (13, 14)
        so = (st % 4) * K1_SS
        a(f"ds_read_b128 v[{base}:{base+3}], v{ra} offset:{so}")
        for u in range(2):
            a(f"ds_read_b64_tr_b16 v[{base+8+4*u}:{base+9+4*u}], v{rw} offset:{so + u*1024}")
            a(f"ds_read_b64_tr_b16 v[{base+10+4*u}:{base+11+4*u}], v{rw} offset:{so + u*1024+256}")
    mreads(0, XA[0])
    a("s_mov_b32 s47, 0")
    a.label("K1_ML")
    for s in range(K1_NS):
        cur = XA[s % 2]; nxt = XA[(s + 1) % 2]
        a("s_waitcnt lgkmcnt(0)")
        if s % 2 == 1:
            a(f"s_waitcnt vmcnt({2*(K1_NS-2) - 8})")
            a("s_barrier")
            missue((s + K1_NS - 3) % K1_NS)
            missue((s + K1_NS - 2) % K1_NS)
        mreads((s + 1) % K1_NS, nxt)
        for u in range(2):
            d = ACC + 16 * u
            a(f"v_mfma_f32_32x32x16_bf16 v[{d}:{d+15}], v[{cur+8+4*u}:{cur+11+4*u}], v[{cur}:{cur+3}], v[{d}:{d+15}]")
    a("s_add_u32 s47, s47, 1")
    a(f"s_cmp_lt_u32 s47, {32//K1_NS}")
    a("s_cbranch_scc1 K1_ML")
    a("s_cmp_ge_u32 s15, 12")
    a("s_cbranch_scc1 K1_FIN")
    a("s_mov_b32 s43, s62")
    a("s_lshl_b32 s45, s14, 2")
    a("s_add_u32 s45, s45, s63")
    h_addr()
    h_epi(ACC, ACC + 16, 0)
    a.label("K1_FIN")
    rt_end(a, 4, wg=200, wave=5, kidx=0)
    a.label("K1_END")
    a("s_endpgm")
    return a.finalize(), 128, 102

D_NST = 3
WS_P1 = 20 << 20
K2_DRING = 131072 + 2048
K2_LDS = K2_DRING + 4 * D_NST * 2048
def gen_k2():
    a = Asm()
    a("s_cmp_ge_u32 s2, 256")
    a("s_cbranch_scc1 K2_END")
    rt_start(a)
    stamp(a, 0)
    a("s_load_dwordx2 s[12:13], s[0:1], 72")
    a("s_load_dwordx2 s[4:5], s[0:1], 0")
    a("s_load_dwordx2 s[6:7], s[0:1], 48")
    a("s_and_b32 s14, s2, 31")
    a("s_lshr_b32 s15, s2, 5")
    a("s_and_b32 s50, s2, 7")
    a("s_lshl_b32 s50, s50, 3")
    a("s_bfe_u32 s51, s2, 0x30003")
    a("s_add_u32 s50, s50, s51")
    a("s_lshr_b32 s51, s2, 6")
    a("v_lshrrev_b32 v1, 6, v0")
    a("v_readfirstlane_b32 s16, v1")
    a("v_and_b32 v2, 63, v0")
    a("s_waitcnt lgkmcnt(0)")
    srd(a, 24, 12, 0x10000000)
    a("v_lshlrev_b32 v3, 4, v2")
    a("s_cmp_ge_u32 s16, 8")
    a("s_cbranch_scc1 K2_DOWN")
    a("s_lshl_b32 s17, s14, 16")
    a("s_lshl_b32 s22, s15, 3")
    a("s_add_u32 s22, s22, s16")
    a("s_lshl_b32 s23, s22, 10")
    a("s_add_u32 s23, s23, s17")
    a(f"s_add_u32 s23, s23, {WS_Q}")
    a("buffer_load_dwordx4 v[8:11], v3, s[24:27], s23 offen")
    a("s_lshl_b32 s18, s16, 13")
    a("s_add_u32 s19, s17, s18")
    a(f"s_add_u32 s20, s19, {WS_K}")
    a(f"s_add_u32 s21, s19, {WS_V}")
    a("s_mov_b32 s28, 0")
    a.label("K2_DMA")
    a("s_add_u32 m0, s18, s28")
    a("buffer_load_dwordx4 v3, s[24:27], s20 offen lds")
    a("s_add_u32 s20, s20, 1024")
    a("s_add_u32 s28, s28, 1024")
    a("s_cmp_lt_u32 s28, 8192")
    a("s_cbranch_scc1 K2_DMA")
    a("s_add_u32 s29, s18, 57344")
    a.label("K2_DMAV")
    a("s_add_u32 m0, s29, s28")
    a("buffer_load_dwordx4 v3, s[24:27], s21 offen lds")
    a("s_add_u32 s21, s21, 1024")
    a("s_add_u32 s28, s28, 1024")
    a("s_cmp_lt_u32 s28, 16384")
    a("s_cbranch_scc1 K2_DMAV")
    a("v_and_b32 v4, 31, v2")
    a("v_lshrrev_b32 v5, 5, v2")
    a("v_and_b32 v6, 15, v2")
    a("v_lshlrev_b32 v6, 4, v6")
    a("v_lshl_add_u32 v6, v5, 8, v6")
    a("v_add_u32 v6, 0x10000, v6")
    a("v_cmp_gt_u32 s[30:31], 16, v4")
    a("v_cmp_eq_u32 vcc, 16, v4")
    a("v_mov_b32 v7, 0x3f803f80")
    a("v_cndmask_b32 v7, 0, v7, vcc")
    VB = [40, 48]; KB = [12, 16]; SB = [64, 80]; OACC = 96; CB = 112; P = 24
    for b in VB:
        for r in range(8): a(f"v_mov_b32 v{b+r}, v7")
    a("v_mov_b32 v20, 0xff800000")
    a("v_mov_b32 v21, 0xff800000")
    a("v_mov_b32 v22, v3")
    a("s_waitcnt vmcnt(8)")
    a("s_barrier")
    stamp(a, 1)
    a("s_and_b32 s40, s2, 7")
    a("s_lshl_b32 s40, s40, 2")
    a("s_bfe_u32 s41, s2, 0x20003")
    a("s_add_u32 s40, s40, s41")
    a(f"s_mul_i32 s40, s40, {2*86*1024}")
    a(f"s_add_u32 s32, s12, {WS_H}")
    a("s_addc_u32 s33, s13, 0")
    a("s_add_u32 s32, s32, s40")
    a("s_addc_u32 s33, s33, 0")
    a("s_and_b32 s33, s33, 0xffff")
    a(f"s_mov_b32 s34, {2*86*1024}")
    a("s_mov_b32 s35, 0x20000")
    srd(a, 36, 6, 1376 * 1024)
    a("v_lshlrev_b32 v34, 7, v2")
    a("s_lshl_b32 s40, s16, 13")
    for t in range(3):
        a("buffer_load_dword v36, v34, s[32:35], s40 offen")
        a("s_add_u32 s40, s40, 65536")
    a("v_lshlrev_b32 v34, 10, v2")
    a("s_lshr_b32 s41, s2, 5")
    a("s_lshl_b32 s41, s41, 7")
    a("v_add_u32 v34, s41, v34")
    a("s_lshl_b32 s40, s16, 16")
    for t in range(3):
        a("buffer_load_dword v36, v34, s[36:39], s40 offen")
        a("s_add_u32 s40, s40, 524288")
    a("s_load_dwordx2 s[56:57], s[0:1], 16")
    a("s_lshr_b32 s40, s2, 3")
    a("s_lshl_b32 s40, s40, 3")
    a("s_add_u32 s40, s40, s16")
    a("s_lshl_b32 s40, s40, 11")
    a("v_and_b32 v34, 15, v2")
    a("v_lshlrev_b32 v34, 7, v34")
    a("s_waitcnt lgkmcnt(0)")
    srd(a, 60, 56, 512 * 1024)
    a("buffer_load_dword v36, v34, s[60:63], s40 offen")
    if YPRIO:
        a("s_cmp_lt_u32 s16, 4")
        a("s_cbranch_scc1 K2_NOPRIO")
        a(f"s_setprio {YPRIO}")
        a.label("K2_NOPRIO")
    def kread(buf, off): a(f"ds_read_b128 v[{KB[buf]}:{KB[buf]+3}], v22 offset:{off}")
    def qk(buf, c):
        S = SB[buf]
        a(f"v_mfma_f32_32x32x16_bf16 v[{S}:{S+15}], v[{KB[buf]}:{KB[buf]+3}], v[8:11], {c}")
    a("s_mov_b32 s52, 4")
    a.label("K2_P1E")
    a("v_mov_b32 v20, 0xff800000")
    a("v_mov_b32 v21, 0xff800000")
    a("v_mov_b32 v22, v3")
    kread(0, 0)
    a("s_waitcnt lgkmcnt(0)")
    qk(0, "0")
    kread(1, 1024)
    a("s_mov_b32 s28, 0")
    a.label("K2_P1")
    for t in range(4):
        a("s_waitcnt lgkmcnt(0)")
        qk((t + 1) % 2, "0")
        kread(t % 2, (t + 2) * 1024)
        S = SB[t % 2]; m = 20 + (t % 2)
        for j in range(8):
            a(f"v_max3_f32 v{m}, v{m}, v{S+2*j}, v{S+2*j+1}")
    a("v_add_u32 v22, 4096, v22")
    a("s_add_u32 s28, s28, 4")
    a("s_cmp_lt_u32 s28, s52")
    a("s_cbranch_scc1 K2_P1")
    a("v_max_f32 v20, v20, v21")
    a("v_mov_b32 v21, v20")
    a("v_permlane32_swap_b32 v20, v21")
    a("v_max_f32 v20, v20, v21")
    a("s_cmp_eq_u32 s52, 4")
    a(f"s_cselect_b32 s53, {f32hex(-64.0)}, 0")
    a("v_sub_f32 v20, s53, v20")
    for r in range(16): a(f"v_mov_b32 v{CB+r}, v20")
    for r in range(16): a(f"v_mov_b32 v{OACC+r}, 0")
    stamp(a, 2)
    a("s_cmp_lg_u32 s52, 4")
    a("s_cbranch_scc1 K2_NOBAR")
    a("s_waitcnt vmcnt(7)")
    a("s_barrier")
    a.label("K2_NOBAR")
    Cs = f"v[{CB}:{CB+15}]"
    a("v_mov_b32 v22, v3")
    a("v_mov_b32 v23, v6")
    def vread(buf, off):
        a("s_mov_b64 exec, s[30:31]")
        a(f"ds_read_b128 v[{VB[buf]}:{VB[buf]+3}], v23 offset:{off}")
        a(f"ds_read_b128 v[{VB[buf]+4}:{VB[buf]+7}], v23 offset:{off+512}")
        a("s_mov_b64 exec, -1")
    a("s_waitcnt lgkmcnt(0)")
    kread(0, 0)
    a("s_waitcnt lgkmcnt(0)")
    qk(0, Cs)
    kread(1, 1024)
    vread(0, 0)
    a("s_mov_b32 s28, 0")
    a.label("K2_P2")
    for t in range(2):
        S = SB[t]; V = VB[t]
        a("s_waitcnt lgkmcnt(0)")
        qk(1 - t, Cs)
        kread(t, (t + 2) * 1024)
        vread(1 - t, (t + 1) * 1024)
        for j in range(8):
            a(f"v_exp_f32 v{S+2*j}, v{S+2*j}")
            a(f"v_exp_f32 v{S+2*j+1}, v{S+2*j+1}")
            if j >= 1:
                a(f"v_cvt_pk_bf16_f32 v{P+j-1}, v{S+2*j-2}, v{S+2*j-1}")
            if j == 5:
                a(f"v_mfma_f32_32x32x16_bf16 v[{OACC}:{OACC+15}], v[{V}:{V+3}], v[{P}:{P+3}], v[{OACC}:{OACC+15}]")
        a(f"v_cvt_pk_bf16_f32 v{P+7}, v{S+14}, v{S+15}")
        a(f"v_mfma_f32_32x32x16_bf16 v[{OACC}:{OACC+15}], v[{V+4}:{V+7}], v[{P+4}:{P+7}], v[{OACC}:{OACC+15}]")
    a("v_add_u32 v22, 2048, v22")
    a("v_add_u32 v23, 2048, v23")
    a("s_add_u32 s28, s28, 2")
    a("s_cmp_lt_u32 s28, 64")
    a("s_cbranch_scc1 K2_P2")
    stamp(a, 3)
    a("s_cmp_lg_u32 s52, 4")
    a("s_cbranch_scc1 K2_OK")
    a("s_mov_b64 s[54:55], 0")
    a("v_mov_b32 v26, 0x207")
    for r in range(9):
        a(f"v_cmp_class_f32 vcc, v{OACC+r}, v26")
        a("s_or_b64 s[54:55], s[54:55], vcc")
    a("s_cmp_eq_u64 s[54:55], 0")
    a("s_cbranch_scc1 K2_OK")
    a("s_mov_b32 s52, 64")
    a("s_branch K2_P1E")
    a.label("K2_OK")
    a(f"v_mov_b32 v20, v{OACC+8}")
    a(f"v_mov_b32 v21, v{OACC+8}")
    a("v_permlane32_swap_b32 v20, v21")
    a("v_rcp_f32 v21, v20")
    for r in range(8):
        a(f"v_mul_f32 v26, v{OACC+r}, v21")
        a(f"v_fma_f32 v27, -v26, v20, v{OACC+r}")
        a(f"v_fma_f32 v{OACC+r}, v27, v21, v26")
    for j in range(4):
        a(f"v_cvt_pk_bf16_f32 v{28+j}, v{OACC+2*j}, v{OACC+2*j+1}")
    a("s_lshl_b32 s23, s22, 15")
    a("s_lshl_b32 s29, s14, 10")
    a("s_add_u32 s23, s23, s29")
    a(f"s_add_u32 s23, s23, {WS_O}")
    a("buffer_store_dwordx4 v[28:31], v3, s[24:27], s23 offen")
    rt_end(a, 5, wg=0, wave=0, kidx=1)
    a("s_branch K2_END")
    a.label("K2_DOWN")
    a("s_sub_u32 s17, s16, 8")
    a("s_and_b32 s19, s2, 7")
    a("s_lshl_b32 s19, s19, 2")
    a("s_bfe_u32 s20, s2, 0x20003")
    a("s_add_u32 s19, s19, s20")
    a("s_lshr_b32 s20, s2, 5")
    srd(a, 28, 6, 1376 * 1024)
    srd(a, 32, 12, H_BYTES, WS_H)
    srd(a, 36, 4, 2048 * 1024)
    a("v_bfe_u32 v7, v2, 3, 2")
    a("v_bfe_u32 v8, v2, 5, 1")
    a("v_lshl_add_u32 v7, v8, 3, v7")
    a("v_lshlrev_b32 v12, 10, v7")
    a("v_bfe_u32 v7, v2, 2, 1")
    a("v_bfe_u32 v8, v2, 4, 1")
    a("v_xor_b32 v7, v7, v8")
    a("v_lshl_add_u32 v12, v7, 6, v12")
    a("v_and_b32 v8, 3, v2")
    a("v_lshl_add_u32 v12, v8, 4, v12")
    a("s_lshl_b32 s21, s20, 7")
    a("v_add_u32 v12, s21, v12")
    a("v_add_u32 v13, 4096, v12")
    a("v_and_b32 v5, 15, v2")
    a("v_lshrrev_b32 v4, 5, v2")
    a("v_lshrrev_b32 v7, 2, v5")
    a("v_lshl_add_u32 v11, v4, 3, v7")
    a("v_lshlrev_b32 v11, 7, v11")
    a("v_bfe_u32 v7, v2, 3, 1")
    a("v_lshl_add_u32 v11, v7, 6, v11")
    a("v_and_b32 v7, 3, v5")
    a("v_lshl_add_u32 v11, v7, 3, v11")
    a("v_bfe_u32 v7, v2, 4, 1")
    a("v_lshl_add_u32 v11, v7, 5, v11")
    a(f"s_mul_i32 s22, s17, {D_NST*2048}")
    a(f"s_add_u32 s22, s22, {K2_DRING}")
    a("v_add_u32 v11, s22, v11")
    a("v_xor_b32 v10, 64, v11")
    a(f"v_add_u32 v14, {86*1024}, v3")
    a(f"s_mul_i32 s23, s19, {2*86*1024}")
    a(f"s_mul_i32 s40, s17, {22*16384}")
    a(f"s_mul_i32 s41, s17, {22*1024}")
    a("s_add_u32 s41, s41, s23")
    a(f"s_add_u32 s30, s40, {22*16384}")
    a(f"s_min_u32 s30, s30, {1376*1024}")
    DACC = 64; AOP = 16; WB = [40, 48]
    for r in range(64): a(f"v_mov_b32 v{DACC+r}, 0")
    def dissue(st):
        a(f"s_add_u32 m0, s22, {st*2048}")
        a("buffer_load_dwordx4 v12, s[28:31], s40 offen lds")
        a(f"s_add_u32 m0, s22, {st*2048+1024}")
        a("buffer_load_dwordx4 v13, s[28:31], s40 offen lds")
        a(f"buffer_load_dwordx4 v[{AOP+8*st}:{AOP+8*st+3}], v3, s[32:35], s41 offen")
        a(f"buffer_load_dwordx4 v[{AOP+8*st+4}:{AOP+8*st+7}], v14, s[32:35], s41 offen")
        a("s_add_u32 s40, s40, 16384")
        a("s_add_u32 s41, s41, 1024")
    for st in range(D_NST - 1): dissue(st)
    a("s_barrier")
    a("s_barrier")
    a(f"s_setprio {DPRIO}")
    def wreads(st, buf):
        for u in range(2):
            ad = 11 if u == 0 else 10
            b = WB[buf] + 4 * u
            a(f"ds_read_b64_tr_b16 v[{b}:{b+1}], v{ad} offset:{st*2048}")
            a(f"ds_read_b64_tr_b16 v[{b+2}:{b+3}], v{ad} offset:{st*2048+512}")
    a(f"s_waitcnt vmcnt({4*(D_NST-2)})")
    wreads(0, 0)
    a("s_mov_b32 s42, 0")
    a.label("K2_DL")
    for i in range(2 * D_NST):
        st = i % D_NST
        dissue((st + D_NST - 1) % D_NST)
        a(f"s_waitcnt vmcnt({4*(D_NST-2)}) lgkmcnt(0)")
        wreads((st + 1) % D_NST, (i + 1) % 2)
        for rt in range(2):
            for u in range(2):
                d = DACC + 16 * (2 * rt + u); b = WB[i % 2] + 4 * u; ao = AOP + 8 * st + 4 * rt
                a(f"v_mfma_f32_32x32x16_bf16 v[{d}:{d+15}], v[{b}:{b+3}], v[{ao}:{ao+3}], v[{d}:{d+15}]")
    a(f"s_add_u32 s42, s42, {2*D_NST}")
    a("s_cmp_lt_u32 s42, 22")
    a("s_cbranch_scc1 K2_DL")
    a("s_cmp_lg_u32 s17, 0")
    a("s_cbranch_scc1 K2_DST")
    a("v_and_b32 v4, 31, v2")
    a("v_lshrrev_b32 v5, 5, v2")
    a("s_lshl_b32 s48, s19, 6")
    a("v_add_u32 v6, s48, v4")
    a("v_lshlrev_b32 v6, 10, v6")
    a("v_lshl_add_u32 v6, v5, 3, v6")
    a("v_add_u32 v6, s21, v6")
    for rt in range(2):
        a(f"s_mov_b32 s49, {rt*32768}")
        for q in range(8):
            a(f"buffer_load_dwordx2 v[{16+2*q}:{17+2*q}], v6, s[36:39], s49 offen offset:{16*q}")
        a("s_waitcnt vmcnt(0)")
        for u in range(2):
            for q in range(4):
                d = DACC + 16 * (2 * rt + u) + 4 * q; xr = 16 + 2 * (4 * u + q)
                for p in range(2):
                    a(f"v_lshlrev_b32 v44, 16, v{xr+p}")
                    a(f"v_and_b32 v45, 0xffff0000, v{xr+p}")
                    a(f"v_add_f32 v{d+2*p}, v{d+2*p}, v44")
                    a(f"v_add_f32 v{d+2*p+1}, v{d+2*p+1}, v45")
    a.label("K2_DST")
    a("s_lshl_b32 s23, s19, 16")
    a("s_lshl_b32 s48, s20, 12")
    a("s_add_u32 s23, s23, s48")
    a("s_lshl_b32 s48, s17, 21")
    a("s_add_u32 s23, s23, s48")
    a(f"s_add_u32 s23, s23, {WS_P}")
    for rt in range(2):
        for u in range(2):
            d = DACC + 16 * (2 * rt + u)
            for j in range(8):
                a(f"v_cvt_pk_bf16_f32 v{16+j}, v{d+2*j}, v{d+2*j+1}")
            a(f"buffer_store_dwordx4 v[16:19], v3, s[24:27], s23 offen")
            a(f"buffer_store_dwordx4 v[20:23], v3, s[24:27], s23 offen offset:1024")
            a(f"s_add_u32 s23, s23, {2048 if u == 0 else 32768 - 2048}")
    rt_end(a, 2, wg=0, wave=8, base=8, kidx=1)
    a.label("K2_END")
    a("s_endpgm")
    return a.finalize(), 128, 102

K3_LDS = 131072
def gen_k3():
    a = Asm()
    a("s_cmp_ge_u32 s2, 256")
    a("s_cbranch_scc1 K3_END")
    rt_start(a)
    stamp(a, 0)
    a("s_load_dwordx2 s[6:7], s[0:1], 16")
    a("s_load_dwordx2 s[10:11], s[0:1], 56")
    a("s_load_dwordx2 s[12:13], s[0:1], 72")
    a("v_lshrrev_b32 v1, 6, v0")
    a("v_readfirstlane_b32 s16, v1")
    a("v_and_b32 v2, 63, v0")
    a("s_and_b32 s14, s2, 7")
    a("s_lshl_b32 s14, s14, 2")
    a("s_bfe_u32 s15, s2, 0x20003")
    a("s_add_u32 s14, s14, s15")
    a("s_lshr_b32 s15, s2, 5")
    a("s_lshr_b32 s17, s16, 1")
    a("s_and_b32 s18, s16, 1")
    a("s_waitcnt lgkmcnt(0)")
    srd(a, 32, 10, 2048 * 1024)
    srd(a, 24, 12, 0x10000000)
    srd(a, 28, 6, 512 * 1024)
    a("v_lshlrev_b32 v3, 4, v2")
    a("s_lshl_b32 s19, s14, 1")
    a("s_add_u32 s19, s19, s17")
    a("s_lshl_b32 s21, s19, 4")
    a("s_lshl_b32 s22, s15, 1")
    a("s_add_u32 s22, s22, s18")
    a("s_add_u32 s21, s21, s22")
    a("s_lshl_b32 s21, s21, 11")
    a(f"s_add_u32 s21, s21, {WS_P}")
    ACC = 64
    for pq in range(4):
        a(f"buffer_load_dwordx4 v[{80+8*pq}:{83+8*pq}], v3, s[24:27], s21 offen")
        a(f"buffer_load_dwordx4 v[{84+8*pq}:{87+8*pq}], v3, s[24:27], s21 offen offset:1024")
        a(f"s_add_u32 s21, s21, {2 << 20}")
    a("s_lshl_b32 s23, s19, 15")
    a("s_lshl_b32 s40, s18, 14")
    a("s_add_u32 s23, s23, s40")
    a(f"s_add_u32 s23, s23, {WS_O}")
    a("s_lshl_b32 s41, s16, 14")
    perm_row(a, 12, 7, 8)
    a("v_lshlrev_b32 v12, 10, v12")
    a("v_and_b32 v8, 3, v2")
    a("v_lshl_add_u32 v12, v8, 4, v12")
    a("s_lshl_b32 s42, s22, 6")
    a("v_add_u32 v12, s42, v12")
    a("s_lshl_b32 s43, s17, 18")
    a("s_lshl_b32 s44, s18, 15")
    a("s_lshl_b32 s45, s17, 14")
    a("s_add_u32 s44, s44, s45")
    a("s_add_u32 s44, s44, 65536")
    a("s_mov_b32 s46, 0")
    a.label("K3_DMA")
    a("s_mov_b32 m0, s41")
    a("buffer_load_dwordx4 v3, s[24:27], s23 offen lds")
    a("s_mov_b32 m0, s44")
    a("buffer_load_dwordx4 v12, s[28:31], s43 offen lds")
    a("s_add_u32 s23, s23, 1024")
    a("s_add_u32 s41, s41, 1024")
    a("s_add_u32 s43, s43, 16384")
    a("s_add_u32 s44, s44, 1024")
    a("s_add_u32 s46, s46, 1")
    a("s_cmp_lt_u32 s46, 16")
    a("s_cbranch_scc1 K3_DMA")
    a("s_lshl_b32 s47, s17, 15")
    a("v_add_u32 v10, s47, v3")
    tr_addr(a, 11, 7, 8)
    a("s_lshl_b32 s47, s18, 15")
    a("s_add_u32 s47, s47, 65536")
    a("v_add_u32 v11, s47, v11")
    a("s_waitcnt vmcnt(0)")
    for j in range(8):
        a(f"v_lshlrev_b32 v{ACC+2*j}, 16, v{80+j}")
        a(f"v_and_b32 v{ACC+2*j+1}, 0xffff0000, v{80+j}")
        for pq in range(1, 4):
            a(f"v_lshlrev_b32 v40, 16, v{80+8*pq+j}")
            a(f"v_and_b32 v41, 0xffff0000, v{80+8*pq+j}")
            a(f"v_add_f32 v{ACC+2*j}, v{ACC+2*j}, v40")
            a(f"v_add_f32 v{ACC+2*j+1}, v{ACC+2*j+1}, v41")
    a("s_barrier")
    stamp(a, 1)
    OP = [16, 24]
    def reads(buf, off):
        b = OP[buf]
        a(f"ds_read_b128 v[{b}:{b+3}], v10 offset:{off}")
        a(f"ds_read_b64_tr_b16 v[{b+4}:{b+5}], v11 offset:{off}")
        a(f"ds_read_b64_tr_b16 v[{b+6}:{b+7}], v11 offset:{off+256}")
    reads(0, 0)
    a("s_mov_b32 s46, 0")
    a.label("K3_L")
    for s in range(4):
        b = OP[s % 2]
        reads((s + 1) % 2, (s + 1) * 1024)
        a("s_waitcnt lgkmcnt(3)")
        a(f"v_mfma_f32_32x32x16_bf16 v[{ACC}:{ACC+15}], v[{b+4}:{b+7}], v[{b}:{b+3}], v[{ACC}:{ACC+15}]")
    a("v_add_u32 v10, 4096, v10")
    a("v_add_u32 v11, 4096, v11")
    a("s_add_u32 s46, s46, 4")
    a("s_cmp_lt_u32 s46, 32")
    a("s_cbranch_scc1 K3_L")
    a("v_and_b32 v4, 31, v2")
    a("v_lshrrev_b32 v5, 5, v2")
    a("s_lshl_b32 s47, s19, 5")
    a("v_add_u32 v6, s47, v4")
    a("v_lshlrev_b32 v6, 10, v6")
    a("v_lshl_add_u32 v6, v5, 3, v6")
    a("v_add_u32 v6, s42, v6")
    for q in range(4):
        a(f"v_cvt_pk_bf16_f32 v{32+2*q}, v{ACC+4*q}, v{ACC+4*q+1}")
        a(f"v_cvt_pk_bf16_f32 v{33+2*q}, v{ACC+4*q+2}, v{ACC+4*q+3}")
        a(f"buffer_store_dwordx2 v[{32+2*q}:{33+2*q}], v6, s[32:35], 0 offen offset:{16*q}")
    rt_end(a, 3, wg=0, wave=0, kidx=2)
    a.label("K3_END")
    a("s_endpgm")
    return a.finalize(), 128, 102

def desc(name, nv, ns):
    return f""".amdhsa_kernel {name}
  .amdhsa_next_free_vgpr {nv}
  .amdhsa_next_free_sgpr {ns}
  .amdhsa_accum_offset {nv}
  .amdhsa_group_segment_fixed_size 0
  .amdhsa_kernarg_size 80
  .amdhsa_user_sgpr_count 2
  .amdhsa_user_sgpr_kernarg_segment_ptr 1
  .amdhsa_system_sgpr_workgroup_id_x 1
.end_amdhsa_kernel"""

def build(path):
    ks = [("k0_kernel", gen_k0(), 128, 256, 0), ("k1_kernel", gen_k1(), 256, 576, K1_LDS), ("k2_kernel", gen_k2(), 256, 768, K2_LDS), ("k3_kernel", gen_k3(), 256, 256, K3_LDS + 1024)]
    out = []
    for n, _, g, b, l in ks:
        out.append(f"; @launch kernel={n} grid=({g},1,1) block=({b},1,1) lds={l}")
    out += ['.amdgcn_target "amdgcn-amd-amdhsa--gfx950"', ".text"]
    for n, (txt, nv, ns), *_ in ks:
        out += [f".globl {n}", ".p2align 8", f".type {n},@function", f"{n}:", txt]
    out.append('.section .rodata,"a"')
    for n, (txt, nv, ns), *_ in ks:
        out += [".p2align 6", desc(n, nv, ns)]
    open(path, "w").write("\n".join(out) + "\n")

if __name__ == "__main__":
    if "stamp" in sys.argv: STAMP = True
    for x in sys.argv:
        if x.startswith("dprio="): DPRIO = int(x[6:])
        if x.startswith("yprio="): YPRIO = int(x[6:])
    build(sys.argv[1])
```

```python
import sys, struct
sys.path.insert(0, "work")
from asmgen import Asm

WS_Q = 0
WS_K = 2 << 20
WS_V = 4 << 20
WS_H = 6 << 20
WS_O = 12 << 20
WS_P = 16 << 20
H_BYTES = 64 * 86 * 1024
C_SCALE = 0.25 * 1.4426950408889634
STAMP = False
WT_OUT = False
DPRIO = 2
YPRIO = 0
_uid = 0

def f32hex(x): return "0x%08x" % struct.unpack("<I", struct.pack("<f", x))[0]

def srd(a, d, ptr_lo, nbytes, off=0):
    if off:
        a(f"s_add_u32 s{d}, s{ptr_lo}, {off}")
        a(f"s_addc_u32 s{d+1}, s{ptr_lo+1}, 0")
        a(f"s_and_b32 s{d+1}, s{d+1}, 0xffff")
    else:
        a(f"s_mov_b32 s{d}, s{ptr_lo}")
        a(f"s_and_b32 s{d+1}, s{ptr_lo+1}, 0xffff")
    a(f"s_mov_b32 s{d+2}, {nbytes}")
    a(f"s_mov_b32 s{d+3}, 0x20000")

def bf16r(a, dst, src):
    a(f"v_cvt_pk_bf16_f32 v{dst}, v{src}, v{src}")
    a(f"v_lshlrev_b32 v{dst}, 16, v{dst}")

def stamp(a, i):
    if not STAMP: return
    a("s_memtime s[90:91]")
    a("s_waitcnt lgkmcnt(0)")
    a(f"s_mov_b32 s{70+i}, s90")

def dbg_srd(a):
    a("s_load_dwordx2 s[92:93], s[0:1], 64")
    a("s_waitcnt lgkmcnt(0)")
    a("s_mov_b32 s96, s92")
    a("s_and_b32 s97, s93, 0xffff")
    a("s_mov_b32 s98, 256")
    a("s_mov_b32 s99, 0x20000")

WS_DBG = 40 << 20
def rt_start(a):
    if not STAMP: return
    dbg_srd(a)
    a("s_memrealtime s[90:91]")
    a("s_waitcnt lgkmcnt(0)")
    a("s_mov_b32 s88, s90")

def rt_end(a, n, wave_sreg=16, wg=0, wave=0, base=0, kidx=0):
    if not STAMP: return
    global _uid
    a("s_waitcnt vmcnt(0) lgkmcnt(0)")
    stamp(a, n - 1)
    a("s_memrealtime s[90:91]")
    a("s_waitcnt lgkmcnt(0)")
    a("v_and_b32 v2, 63, v0")
    a("v_cmp_eq_u32 vcc, 0, v2")
    a("s_and_saveexec_b64 s[94:95], vcc")
    a("s_lshl_b32 s89, s2, 4")
    a(f"s_add_u32 s89, s89, s{wave_sreg}")
    a("s_lshl_b32 s89, s89, 3")
    a(f"s_add_u32 s89, s89, {WS_DBG + kidx*65536}")
    a("v_mov_b32 v4, s88")
    a("v_mov_b32 v5, s90")
    a("buffer_store_dwordx2 v[4:5], v2, s[24:27], s89 offen")
    _uid += 1
    lab = f"STF_{_uid}"
    a(f"s_cmp_lg_u32 s2, {wg}")
    a(f"s_cbranch_scc1 {lab}")
    a(f"s_cmp_lg_u32 s{wave_sreg}, {wave}")
    a(f"s_cbranch_scc1 {lab}")
    for i in range(1, n):
        a(f"s_sub_u32 s90, s{70+i}, s70")
        a("v_mov_b32 v1, s90")
        a(f"buffer_store_dword v1, v2, s[96:99], 0 offen offset:{4*(base+i)}")
    a.label(lab)
    a("s_waitcnt vmcnt(0)")

def tr_addr(a, dst, t0, t1, lane=2):
    a(f"v_and_b32 v{t0}, 15, v{lane}")
    a(f"v_lshrrev_b32 v{dst}, 2, v{t0}")
    a(f"v_lshrrev_b32 v{t1}, 5, v{lane}")
    a(f"v_lshl_add_u32 v{dst}, v{t1}, 3, v{dst}")
    a(f"v_lshlrev_b32 v{dst}, 6, v{dst}")
    a(f"v_and_b32 v{t0}, 3, v{t0}")
    a(f"v_lshlrev_b32 v{t0}, 3, v{t0}")
    a(f"v_bfe_u32 v{t1}, v{lane}, 4, 1")
    a(f"v_lshl_add_u32 v{t0}, v{t1}, 5, v{t0}")
    a(f"v_add_u32 v{dst}, v{dst}, v{t0}")

def perm_row(a, dst, t0, t1, lane=2):
    a(f"v_lshrrev_b32 v{t0}, 2, v{lane}")
    a(f"v_and_b32 v{dst}, 3, v{t0}")
    a(f"v_bfe_u32 v{t1}, v{t0}, 3, 1")
    a(f"v_lshl_add_u32 v{dst}, v{t1}, 2, v{dst}")
    a(f"v_bfe_u32 v{t1}, v{t0}, 2, 1")
    a(f"v_lshl_add_u32 v{dst}, v{t1}, 3, v{dst}")

WS_XN = 32 << 20
def gen_k0():
    a = Asm()
    a("s_cmp_ge_u32 s2, 128")
    a("s_cbranch_scc1 K0_END")
    rt_start(a)
    stamp(a, 0)
    a("s_load_dwordx2 s[4:5], s[0:1], 0")
    a("s_load_dwordx2 s[12:13], s[0:1], 72")
    a("v_lshrrev_b32 v1, 6, v0")
    a("v_readfirstlane_b32 s16, v1")
    a("v_and_b32 v2, 63, v0")
    a("s_waitcnt lgkmcnt(0)")
    srd(a, 20, 4, 2048 * 1024)
    srd(a, 24, 12, 0x10000000)
    a("v_lshrrev_b32 v3, 4, v2")
    a("v_and_b32 v4, 15, v2")
    a("s_lshl_b32 s17, s2, 4")
    a("s_lshl_b32 s18, s16, 2")
    a("s_add_u32 s17, s17, s18")
    a("v_add_u32 v5, s17, v3")
    a("v_lshlrev_b32 v6, 10, v5")
    a("v_lshl_add_u32 v6, v4, 4, v6")
    X = 8; U = 32
    for c in range(4):
        a(f"buffer_load_dwordx4 v[{X+4*c}:{X+4*c+3}], v6, s[20:23], 0 offen offset:{256*c}")
    a("s_load_dwordx2 s[6:7], s[0:1], 8")
    a("s_load_dwordx4 s[8:11], s[0:1], 32")
    a("s_and_b32 s30, s2, 7")
    a("s_lshr_b32 s31, s2, 3")
    a("s_lshl_b32 s31, s31, 2")
    a("s_add_u32 s31, s31, s16")
    a("v_lshrrev_b32 v75, 3, v2")
    a("s_lshl_b32 s31, s31, 3")
    a("v_add_u32 v75, s31, v75")
    a("v_and_b32 v76, 7, v2")
    a("s_waitcnt lgkmcnt(0)")
    a("s_cmp_lt_u32 s30, 3")
    a("s_cbranch_scc0 K0_WF")
    srd(a, 32, 6, 512 * 3072)
    a("v_mul_u32_u24 v77, 3072, v75")
    a("v_lshl_add_u32 v77, v76, 7, v77")
    a("s_lshl_b32 s31, s30, 10")
    a("buffer_load_dword v78, v77, s[32:35], s31 offen")
    a("buffer_load_dword v78, v77, s[32:35], s31 offen")
    a("s_branch K0_WD")
    a.label("K0_WF")
    srd(a, 32, 8, 512 * 2752)
    srd(a, 36, 10, 512 * 2752)
    a("v_mul_u32_u24 v77, 2752, v75")
    a("v_and_b32 v79, 3, v76")
    a("v_lshl_add_u32 v77, v79, 7, v77")
    a("s_sub_u32 s31, s30, 3")
    a("s_lshl_b32 s31, s31, 9")
    a("v_cmp_gt_u32 vcc, 4, v76")
    a("s_and_saveexec_b64 s[40:41], vcc")
    a("buffer_load_dword v78, v77, s[32:35], s31 offen")
    a("s_andn2_b64 exec, s[40:41], exec")
    a("buffer_load_dword v78, v77, s[36:39], s31 offen")
    a("s_mov_b64 exec, s[40:41]")
    a.label("K0_WD")
    srd(a, 32, 8, 512 * 2752)
    srd(a, 36, 10, 512 * 2752)
    a("v_and_b32 v79, 7, v2")
    a("s_lshr_b32 s31, s2, 3")
    a("s_lshl_b32 s31, s31, 2")
    a("s_add_u32 s31, s31, s16")
    a("s_lshl_b32 s31, s31, 3")
    a("v_add_u32 v79, s31, v79")
    a("v_mul_u32_u24 v77, 2752, v79")
    a("v_bfe_u32 v79, v2, 3, 1")
    a("v_lshl_add_u32 v77, v79, 7, v77")
    a("v_add_u32 v77, 2560, v77")
    a("buffer_load_dword v78, v77, s[32:35], 0 offen")
    a("buffer_load_dword v78, v77, s[36:39], 0 offen")
    a("v_lshrrev_b32 v7, 5, v5")
    a("v_lshlrev_b32 v7, 15, v7")
    a("v_lshrrev_b32 v66, 1, v4")
    a("v_lshl_add_u32 v7, v66, 10, v7")
    a("v_and_b32 v66, 1, v4")
    a("v_lshl_add_u32 v7, v66, 9, v7")
    a("v_and_b32 v66, 31, v5")
    a("v_lshl_add_u32 v7, v66, 4, v7")
    a("s_waitcnt vmcnt(4)")
    def red16(r, t):
        for ctl in ("quad_perm:[1,0,3,2]", "quad_perm:[2,3,0,1]", "row_half_mirror", "row_mirror"):
            a(f"v_add_f32_dpp v{t}, v{r}, v{r} {ctl} row_mask:0xf bank_mask:0xf")
            a(f"v_mov_b32 v{r}, v{t}")
    for d in range(16):
        a(f"v_lshlrev_b32 v{U+2*d}, 16, v{X+d}")
        a(f"v_and_b32 v{U+2*d+1}, 0xffff0000, v{X+d}")
    a(f"v_add_f32 v67, v{U}, v{U+1}")
    a(f"v_add_f32 v68, v{U+2}, v{U+3}")
    for j in range(4, 32, 2):
        a(f"v_add_f32 v67, v67, v{U+j}")
        a(f"v_add_f32 v68, v68, v{U+j+1}")
    a("v_add_f32 v67, v67, v68")
    red16(67, 68)
    a(f"v_mul_f32 v67, {f32hex(1/512)}, v67")
    a(f"v_sub_f32 v69, v{U}, v67")
    a("v_mul_f32 v70, v69, v69")
    a(f"v_sub_f32 v71, v{U+1}, v67")
    a("v_mul_f32 v72, v71, v71")
    for j in range(2, 32, 2):
        a(f"v_sub_f32 v69, v{U+j}, v67")
        a("v_fmac_f32 v70, v69, v69")
        a(f"v_sub_f32 v71, v{U+j+1}, v67")
        a("v_fmac_f32 v72, v71, v71")
    a("v_add_f32 v70, v70, v72")
    red16(70, 68)
    a(f"v_mul_f32 v70, {f32hex(1/512)}, v70")
    bf16r(a, 67, 67)
    bf16r(a, 70, 70)
    a(f"v_add_f32 v70, {f32hex(1e-5)}, v70")
    bf16r(a, 70, 70)
    a("v_sqrt_f32 v70, v70")
    bf16r(a, 70, 70)
    a("v_rcp_f32 v71, v70")
    for d in range(16):
        for h in range(2):
            r = U + 2 * d + h
            a(f"v_sub_f32 v{r}, v{r}, v67")
        a(f"v_cvt_pk_bf16_f32 v72, v{U+2*d}, v{U+2*d+1}")
        a(f"v_lshlrev_b32 v{U+2*d}, 16, v72")
        a(f"v_and_b32 v{U+2*d+1}, 0xffff0000, v72")
        for h in range(2):
            r = U + 2 * d + h
            a(f"v_mul_f32 v73, v{r}, v71")
            a(f"v_fma_f32 v74, -v73, v70, v{r}")
            a(f"v_fma_f32 v{r}, v74, v71, v73")
        a(f"v_cvt_pk_bf16_f32 v{X+d}, v{U+2*d}, v{U+2*d+1}")
    for c in range(4):
        a(f"s_mov_b32 s19, {WS_XN + 8192*c}")
        a(f"buffer_store_dwordx4 v[{X+4*c}:{X+4*c+3}], v7, s[24:27], s19 offen")
    rt_end(a, 2, wg=0, wave=0, kidx=3)
    a.label("K0_END")
    a("s_endpgm")
    return a.finalize(), 80, 102

K1_NS = 8
K1_SS = 14336
K1_LDS = K1_NS * K1_SS

def gen_k1():
    a = Asm()
    a("s_cmp_ge_u32 s2, 256")
    a("s_cbranch_scc1 K1_END")
    rt_start(a)
    stamp(a, 0)
    a("s_load_dwordx2 s[6:7], s[0:1], 8")
    a("s_load_dwordx4 s[8:11], s[0:1], 32")
    a("s_load_dwordx2 s[12:13], s[0:1], 72")
    a("s_lshr_b32 s14, s2, 4")
    a("s_and_b32 s15, s2, 7")
    a("s_lshl_b32 s15, s15, 1")
    a("s_bfe_u32 s17, s2, 0x10003")
    a("s_add_u32 s15, s15, s17")
    a("v_lshrrev_b32 v1, 6, v0")
    a("v_readfirstlane_b32 s16, v1")
    a("v_and_b32 v2, 63, v0")
    a("s_waitcnt lgkmcnt(0)")
    srd(a, 24, 12, 0x10000000)
    srd(a, 48, 8, 512 * 2752)
    srd(a, 52, 10, 512 * 2752)
    a("v_lshlrev_b32 v6, 4, v2")
    a("v_and_b32 v3, 31, v2")
    a("v_lshrrev_b32 v4, 5, v2")
    a("v_and_b32 v5, 15, v2")
    a(f"s_mov_b32 s46, {f32hex(-1.4426950408889634)}")
    ACC = 64; XA = [16, 32]
    a("s_cmp_eq_u32 s16, 8")
    a("s_cbranch_scc1 K1_MINI")
    a("s_lshr_b32 s19, s16, 2")
    a("s_and_b32 s21, s16, 3")
    a("s_cmp_lt_u32 s15, 6")
    a("s_cbranch_scc0 K1_FFN")
    srd(a, 28, 6, 512 * 3072)
    a("s_mov_b32 s36, 3072")
    a("s_lshl_b32 s37, s15, 9")
    a("s_lshl_b32 s38, s19, 8")
    a("s_add_u32 s37, s37, s38")
    a("s_branch K1_SEL")
    a.label("K1_FFN")
    a("s_cmp_eq_u32 s19, 0")
    a("s_cselect_b32 s28, s48, s52")
    a("s_cselect_b32 s29, s49, s53")
    a(f"s_mov_b32 s30, {512*2752}")
    a("s_mov_b32 s31, 0x20000")
    a("s_mov_b32 s36, 2752")
    a("s_sub_u32 s37, s15, 6")
    a("s_lshl_b32 s37, s37, 8")
    a.label("K1_SEL")
    a("v_lshrrev_b32 v7, 4, v2")
    a("v_bfe_u32 v8, v2, 2, 2")
    a("v_xor_b32 v8, v8, v7")
    a("v_lshlrev_b32 v8, 6, v8")
    a("v_and_b32 v9, 3, v2")
    a("v_lshl_add_u32 v8, v9, 4, v8")
    a("s_lshl_b32 s38, s21, 2")
    a("v_add_u32 v7, s38, v7")
    a("v_mul_lo_u32 v12, v7, s36")
    a("v_add_u32 v12, v12, v8")
    a("v_add_u32 v12, s37, v12")
    a("s_lshl_b32 s39, s36, 4")
    a("s_lshl_b32 s18, s16, 10")
    a("s_lshl_b32 s41, s14, 2")
    a("s_add_u32 s41, s41, s21")
    a("s_lshl_b32 s41, s41, 15")
    a("s_lshl_b32 s42, s19, 10")
    a("s_add_u32 s41, s41, s42")
    a(f"s_add_u32 s41, s41, {WS_XN}")
    a("s_lshl_b32 s43, s21, 10")
    a("s_add_u32 s43, s43, 8192")
    a("s_mov_b32 s40, 0")
    def issue(st):
        a(f"s_add_u32 m0, s18, {st*K1_SS}")
        a("buffer_load_dwordx4 v12, s[28:31], s40 offen lds")
        a("s_add_u32 s40, s40, s39")
        if st % 2 == 0:
            a(f"s_mul_i32 s44, s19, {K1_SS}")
            a("s_add_u32 s44, s44, s43")
            a(f"s_add_u32 m0, s44, {st*K1_SS}")
            a("buffer_load_dwordx4 v6, s[24:27], s41 offen lds")
            a("s_add_u32 s41, s41, 2048")
    for st in range(K1_NS - 2): issue(st)
    a("s_lshl_b32 s45, s19, 11")
    a("s_add_u32 s45, s45, 8192")
    a("v_add_u32 v10, s45, v6")
    a("v_lshrrev_b32 v7, 2, v5")
    a("v_lshl_add_u32 v11, v4, 3, v7")
    a("v_lshlrev_b32 v11, 8, v11")
    a("v_xor_b32 v7, s21, v7")
    a("v_lshl_add_u32 v11, v7, 6, v11")
    a("v_and_b32 v7, 3, v5")
    a("v_lshl_add_u32 v11, v7, 3, v11")
    a("v_bfe_u32 v7, v2, 4, 1")
    a("v_lshl_add_u32 v11, v7, 5, v11")
    a(f"v_add_u32 v13, {4*K1_SS}, v10")
    a(f"v_add_u32 v14, {4*K1_SS}, v11")
    for r in range(64): a(f"v_mov_b32 v{ACC+r}, 0")
    a(f"s_waitcnt vmcnt({3*(K1_NS-2)//2 - 3})")
    a("s_barrier")
    stamp(a, 1)

    def loop(tag, vorient):
        def reads(st, base):
            ra, rw = (10, 11) if st < 4 else (13, 14)
            so = (st % 4) * K1_SS
            for rt in range(2):
                a(f"ds_read_b128 v[{base+4*rt}:{base+4*rt+3}], v{ra} offset:{so + rt*1024}")
            for u in range(2):
                o = so + u * 4096
                a(f"ds_read_b64_tr_b16 v[{base+8+4*u}:{base+9+4*u}], v{rw} offset:{o}")
                a(f"ds_read_b64_tr_b16 v[{base+10+4*u}:{base+11+4*u}], v{rw} offset:{o+1024}")
        reads(0, XA[0])
        a("s_mov_b32 s47, 0")
        a.label(f"K1_L{tag}")
        for s in range(K1_NS):
            cur = XA[s % 2]; nxt = XA[(s + 1) % 2]
            if s % 2 == 1:
                a("s_waitcnt lgkmcnt(0)")
                a(f"s_waitcnt vmcnt({3*(K1_NS-2)//2 - 6})")
                a("s_barrier")
                issue((s + K1_NS - 3) % K1_NS)
                issue((s + K1_NS - 2) % K1_NS)
            else:
                a("s_waitcnt lgkmcnt(0)")
            reads((s + 1) % K1_NS, nxt)
            for rt in range(2):
                for u in range(2):
                    d = ACC + 16 * (2 * rt + u)
                    xa = f"v[{cur+4*rt}:{cur+4*rt+3}]"; wa = f"v[{cur+8+4*u}:{cur+11+4*u}]"
                    A, B = (xa, wa) if vorient else (wa, xa)
                    a(f"v_mfma_f32_32x32x16_bf16 v[{d}:{d+15}], {A}, {B}, v[{d}:{d+15}]")
        a("s_add_u32 s47, s47, 1")
        a(f"s_cmp_lt_u32 s47, {32//K1_NS}")
        a(f"s_cbranch_scc1 K1_L{tag}")

    def wd_warm():
        a("s_load_dwordx2 s[56:57], s[0:1], 48")
        a("s_lshr_b32 s44, s2, 3")
        a("s_lshl_b32 s44, s44, 3")
        a("s_add_u32 s44, s44, s16")
        a(f"s_mul_i32 s44, s44, {43*128}")
        a("v_lshlrev_b32 v48, 7, v2")
        a("v_cmp_gt_u32 vcc, 43, v2")
        a("s_waitcnt lgkmcnt(0)")
        srd(a, 60, 56, 1376 * 1024)
        a("s_and_saveexec_b64 s[56:57], vcc")
        a("buffer_load_dword v49, v48, s[60:63], s44 offen")
        a("s_mov_b64 exec, s[56:57]")

    def h_epi(dg, du, soff):
        for ks in range(2):
            for p in range(4):
                r0 = 8 * ks + 2 * p
                a(f"v_cvt_pk_bf16_f32 v20, v{dg+r0}, v{dg+r0+1}")
                a(f"v_cvt_pk_bf16_f32 v21, v{du+r0}, v{du+r0+1}")
                a("v_lshlrev_b32 v22, 16, v20")
                a("v_and_b32 v23, 0xffff0000, v20")
                a("v_lshlrev_b32 v24, 16, v21")
                a("v_and_b32 v25, 0xffff0000, v21")
                for g in (22, 23):
                    a(f"v_mul_f32 v26, s46, v{g}")
                    a("v_exp_f32 v26, v26")
                    a("v_add_f32 v26, 1.0, v26")
                    a("v_rcp_f32 v26, v26")
                    a(f"v_mul_f32 v{g}, v{g}, v26")
                a("v_cvt_pk_bf16_f32 v20, v22, v23")
                a("v_lshlrev_b32 v22, 16, v20")
                a("v_and_b32 v23, 0xffff0000, v20")
                a("v_mul_f32 v22, v22, v24")
                a("v_mul_f32 v23, v23, v25")
                a(f"v_cvt_pk_bf16_f32 v{16+p}, v22, v23")
            a(f"s_mov_b32 s47, {soff + ks*1024}")
            a("buffer_store_dwordx4 v[16:19], v9, s[24:27], s47 offen")

    def h_addr():
        a(f"s_mul_i32 s45, s45, {86*1024}")
        a("s_lshl_b32 s43, s43, 11")
        a("s_add_u32 s43, s43, s45")
        a(f"s_add_u32 s43, s43, {WS_H}")
        a("v_add_u32 v9, s43, v6")

    a("s_lshl_b32 s42, s14, 2")
    a("s_lshl_b32 s43, s19, 1")
    a("s_add_u32 s42, s42, s43")
    a("s_cmp_ge_u32 s15, 4")
    a("s_cselect_b32 s58, 1, 0")
    a("s_cmp_lt_u32 s15, 6")
    a("s_cselect_b32 s59, 1, 0")
    a("s_and_b32 s58, s58, s59")
    a("s_lshl_b32 s43, s21, 10")
    a("s_add_u32 s43, s43, 8192")
    a("s_cmp_eq_u32 s58, 1")
    a("s_cbranch_scc1 K1_VLOOP")
    loop("T", False)
    stamp(a, 2)
    wd_warm()
    a("s_cmp_ge_u32 s15, 6")
    a("s_cbranch_scc1 K1_EPI_H")
    a("s_lshr_b32 s43, s15, 1")
    a("s_lshl_b32 s43, s43, 21")
    a("s_and_b32 s44, s15, 1")
    a("s_lshl_b32 s44, s44, 20")
    a("s_add_u32 s43, s43, s44")
    a("s_lshl_b32 s44, s21, 17")
    a("s_add_u32 s43, s43, s44")
    a("s_lshl_b32 s44, s42, 10")
    a("s_add_u32 s43, s43, s44")
    a("v_add_u32 v9, s43, v6")
    a("s_cmp_lt_u32 s15, 2")
    a(f"s_cselect_b32 s44, {f32hex(C_SCALE)}, 1.0")
    a("v_mov_b32 v28, s44")
    for rt in range(2):
        for u in range(2):
            d = ACC + 16 * (2 * rt + u)
            for hh in range(2):
                for j in range(8):
                    a(f"v_mul_f32 v{d+8*hh+j}, v{d+8*hh+j}, v28")
                for j in range(4):
                    a(f"v_cvt_pk_bf16_f32 v{16+j}, v{d+8*hh+2*j}, v{d+8*hh+2*j+1}")
                a(f"s_mov_b32 s45, {(8 * u + hh) * 65536 + rt * 1024}")
                a("buffer_store_dwordx4 v[16:19], v9, s[24:27], s45 offen")
    a("s_branch K1_FIN")
    a.label("K1_EPI_H")
    a("s_sub_u32 s43, s15, 6")
    a("s_lshl_b32 s43, s43, 2")
    a("s_add_u32 s43, s43, s21")
    a("s_mov_b32 s45, s42")
    h_addr()
    for rt in range(2):
        h_epi(ACC + 32 * rt, ACC + 32 * rt + 16, rt * 86 * 1024)
    a("s_branch K1_FIN")
    a.label("K1_VLOOP")
    loop("V", True)
    wd_warm()
    a("s_and_b32 s43, s15, 1")
    a("s_lshl_b32 s43, s43, 20")
    a("s_lshl_b32 s44, s21, 17")
    a("s_add_u32 s43, s43, s44")
    a(f"s_add_u32 s43, s43, {WS_V}")
    a("s_lshl_b32 s44, s42, 10")
    a("s_add_u32 s43, s43, s44")
    a("v_lshrrev_b32 v9, 4, v3")
    a("v_lshlrev_b32 v9, 16, v9")
    a("v_lshl_add_u32 v9, v4, 8, v9")
    a("v_lshl_add_u32 v9, v5, 4, v9")
    a("v_add_u32 v9, s43, v9")
    for rt in range(2):
        for u in range(2):
            d = ACC + 16 * (2 * rt + u)
            for g in range(2):
                for j in range(4):
                    a(f"v_cvt_pk_bf16_f32 v{16+j}, v{d+8*g+2*j}, v{d+8*g+2*j+1}")
                a(f"s_mov_b32 s45, {8 * u * 65536 + rt * 1024 + g * 512}")
                a("buffer_store_dwordx4 v[16:19], v9, s[24:27], s45 offen")
    a("s_branch K1_FIN")
    a.label("K1_MINI")
    a("s_lshr_b32 s62, s15, 2")
    a("s_add_u32 s62, s62, 40")
    a("s_and_b32 s63, s15, 3")
    a("s_cmp_ge_u32 s15, 12")
    a("s_cselect_b32 s50, 0, s50")
    a(f"s_cselect_b32 s54, 0, {512*2752}")
    a("s_cselect_b32 s50, 0, s54")
    a("v_lshrrev_b32 v7, 2, v2")
    a("s_mov_b32 s56, 2752")
    a("v_mul_lo_u32 v15, v7, s56")
    a("v_and_b32 v8, 3, v2")
    a("v_lshl_add_u32 v15, v8, 4, v15")
    a("s_lshl_b32 s57, s62, 6")
    a("v_add_u32 v15, s57, v15")
    a("s_mov_b32 s40, 0")
    def missue(st):
        a(f"s_mov_b32 m0, {st*K1_SS + 12288}")
        a("buffer_load_dwordx4 v15, s[48:51], s40 offen lds")
        a(f"s_mov_b32 m0, {st*K1_SS + 13312}")
        a("buffer_load_dwordx4 v15, s[52:55], s40 offen lds")
        a(f"s_add_u32 s40, s40, {2752*16}")
    for st in range(K1_NS - 2): missue(st)
    tr_addr(a, 11, 7, 8)
    a("v_add_u32 v11, 12288, v11")
    a("s_lshl_b32 s45, s63, 10")
    a("s_add_u32 s45, s45, 8192")
    a("v_add_u32 v10, s45, v6")
    a(f"v_add_u32 v13, {4*K1_SS}, v10")
    a(f"v_add_u32 v14, {4*K1_SS}, v11")
    for r in range(32): a(f"v_mov_b32 v{ACC+r}, 0")
    a(f"s_waitcnt vmcnt({2*(K1_NS-2) - 4})")
    a("s_barrier")
    def mreads(st, base):
        ra, rw = (10, 11) if st < 4 else (13, 14)
        so = (st % 4) * K1_SS
        a(f"ds_read_b128 v[{base}:{base+3}], v{ra} offset:{so}")
        for u in range(2):
            a(f"ds_read_b64_tr_b16 v[{base+8+4*u}:{base+9+4*u}], v{rw} offset:{so + u*1024}")
            a(f"ds_read_b64_tr_b16 v[{base+10+4*u}:{base+11+4*u}], v{rw} offset:{so + u*1024+256}")
    mreads(0, XA[0])
    a("s_mov_b32 s47, 0")
    a.label("K1_ML")
    for s in range(K1_NS):
        cur = XA[s % 2]; nxt = XA[(s + 1) % 2]
        a("s_waitcnt lgkmcnt(0)")
        if s % 2 == 1:
            a(f"s_waitcnt vmcnt({2*(K1_NS-2) - 8})")
            a("s_barrier")
            missue((s + K1_NS - 3) % K1_NS)
            missue((s + K1_NS - 2) % K1_NS)
        mreads((s + 1) % K1_NS, nxt)
        for u in range(2):
            d = ACC + 16 * u
            a(f"v_mfma_f32_32x32x16_bf16 v[{d}:{d+15}], v[{cur+8+4*u}:{cur+11+4*u}], v[{cur}:{cur+3}], v[{d}:{d+15}]")
    a("s_add_u32 s47, s47, 1")
    a(f"s_cmp_lt_u32 s47, {32//K1_NS}")
    a("s_cbranch_scc1 K1_ML")
    a("s_cmp_ge_u32 s15, 12")
    a("s_cbranch_scc1 K1_FIN")
    a("s_mov_b32 s43, s62")
    a("s_lshl_b32 s45, s14, 2")
    a("s_add_u32 s45, s45, s63")
    h_addr()
    h_epi(ACC, ACC + 16, 0)
    a.label("K1_FIN")
    rt_end(a, 4, wg=200, wave=5, kidx=0)
    a.label("K1_END")
    a("s_endpgm")
    return a.finalize(), 128, 102

D_NST = 3
WS_P1 = 20 << 20
K2_DRING = 131072 + 2048
K2_LDS = K2_DRING + 4 * D_NST * 2048
def gen_k2():
    a = Asm()
    a("s_cmp_ge_u32 s2, 256")
    a("s_cbranch_scc1 K2_END")
    rt_start(a)
    stamp(a, 0)
    a("s_load_dwordx2 s[12:13], s[0:1], 72")
    a("s_load_dwordx2 s[4:5], s[0:1], 0")
    a("s_load_dwordx2 s[6:7], s[0:1], 48")
    a("s_and_b32 s14, s2, 31")
    a("s_lshr_b32 s15, s2, 5")
    a("s_and_b32 s50, s2, 7")
    a("s_lshl_b32 s50, s50, 3")
    a("s_bfe_u32 s51, s2, 0x30003")
    a("s_add_u32 s50, s50, s51")
    a("s_lshr_b32 s51, s2, 6")
    a("v_lshrrev_b32 v1, 6, v0")
    a("v_readfirstlane_b32 s16, v1")
    a("v_and_b32 v2, 63, v0")
    a("s_waitcnt lgkmcnt(0)")
    srd(a, 24, 12, 0x10000000)
    a("v_lshlrev_b32 v3, 4, v2")
    a("s_cmp_ge_u32 s16, 8")
    a("s_cbranch_scc1 K2_DOWN")
    a("s_lshl_b32 s17, s14, 16")
    a("s_lshl_b32 s22, s15, 3")
    a("s_add_u32 s22, s22, s16")
    a("s_lshl_b32 s23, s22, 10")
    a("s_add_u32 s23, s23, s17")
    a(f"s_add_u32 s23, s23, {WS_Q}")
    a("buffer_load_dwordx4 v[8:11], v3, s[24:27], s23 offen")
    a("s_lshl_b32 s18, s16, 13")
    a("s_add_u32 s19, s17, s18")
    a(f"s_add_u32 s20, s19, {WS_K}")
    a(f"s_add_u32 s21, s19, {WS_V}")
    a("s_mov_b32 s28, 0")
    a.label("K2_DMA")
    a("s_add_u32 m0, s18, s28")
    a("buffer_load_dwordx4 v3, s[24:27], s20 offen lds")
    a("s_add_u32 s20, s20, 1024")
    a("s_add_u32 s28, s28, 1024")
    a("s_cmp_lt_u32 s28, 8192")
    a("s_cbranch_scc1 K2_DMA")
    a("s_add_u32 s29, s18, 57344")
    a.label("K2_DMAV")
    a("s_add_u32 m0, s29, s28")
    a("buffer_load_dwordx4 v3, s[24:27], s21 offen lds")
    a("s_add_u32 s21, s21, 1024")
    a("s_add_u32 s28, s28, 1024")
    a("s_cmp_lt_u32 s28, 16384")
    a("s_cbranch_scc1 K2_DMAV")
    a("v_and_b32 v4, 31, v2")
    a("v_lshrrev_b32 v5, 5, v2")
    a("v_and_b32 v6, 15, v2")
    a("v_lshlrev_b32 v6, 4, v6")
    a("v_lshl_add_u32 v6, v5, 8, v6")
    a("v_add_u32 v6, 0x10000, v6")
    a("v_cmp_gt_u32 s[30:31], 16, v4")
    a("v_cmp_eq_u32 vcc, 16, v4")
    a("v_mov_b32 v7, 0x3f803f80")
    a("v_cndmask_b32 v7, 0, v7, vcc")
    VB = [40, 48]; KB = [12, 16]; SB = [64, 80]; OACC = 96; CB = 112; P = 24
    for b in VB:
        for r in range(8): a(f"v_mov_b32 v{b+r}, v7")
    a("v_mov_b32 v20, 0xff800000")
    a("v_mov_b32 v21, 0xff800000")
    a("v_mov_b32 v22, v3")
    a("s_waitcnt vmcnt(8)")
    a("s_barrier")
    stamp(a, 1)
    a("s_and_b32 s40, s2, 7")
    a("s_lshl_b32 s40, s40, 2")
    a("s_bfe_u32 s41, s2, 0x20003")
    a("s_add_u32 s40, s40, s41")
    a(f"s_mul_i32 s40, s40, {2*86*1024}")
    a(f"s_add_u32 s32, s12, {WS_H}")
    a("s_addc_u32 s33, s13, 0")
    a("s_add_u32 s32, s32, s40")
    a("s_addc_u32 s33, s33, 0")
    a("s_and_b32 s33, s33, 0xffff")
    a(f"s_mov_b32 s34, {2*86*1024}")
    a("s_mov_b32 s35, 0x20000")
    srd(a, 36, 6, 1376 * 1024)
    a("v_lshlrev_b32 v34, 7, v2")
    a("s_lshl_b32 s40, s16, 13")
    for t in range(3):
        a("buffer_load_dword v36, v34, s[32:35], s40 offen")
        a("s_add_u32 s40, s40, 65536")
    a("v_lshlrev_b32 v34, 10, v2")
    a("s_lshr_b32 s41, s2, 5")
    a("s_lshl_b32 s41, s41, 7")
    a("v_add_u32 v34, s41, v34")
    a("s_lshl_b32 s40, s16, 16")
    for t in range(3):
        a("buffer_load_dword v36, v34, s[36:39], s40 offen")
        a("s_add_u32 s40, s40, 524288")
    a("s_load_dwordx2 s[56:57], s[0:1], 16")
    a("s_lshr_b32 s40, s2, 3")
    a("s_lshl_b32 s40, s40, 3")
    a("s_add_u32 s40, s40, s16")
    a("s_lshl_b32 s40, s40, 11")
    a("v_and_b32 v34, 15, v2")
    a("v_lshlrev_b32 v34, 7, v34")
    a("s_waitcnt lgkmcnt(0)")
    srd(a, 60, 56, 512 * 1024)
    a("buffer_load_dword v36, v34, s[60:63], s40 offen")
    if YPRIO:
        a("s_cmp_lt_u32 s16, 4")
        a("s_cbranch_scc1 K2_NOPRIO")
        a(f"s_setprio {YPRIO}")
        a.label("K2_NOPRIO")
    def kread(buf, off): a(f"ds_read_b128 v[{KB[buf]}:{KB[buf]+3}], v22 offset:{off}")
    def qk(buf, c):
        S = SB[buf]
        a(f"v_mfma_f32_32x32x16_bf16 v[{S}:{S+15}], v[{KB[buf]}:{KB[buf]+3}], v[8:11], {c}")
    a("s_mov_b32 s52, 4")
    a.label("K2_P1E")
    a("v_mov_b32 v20, 0xff800000")
    a("v_mov_b32 v21, 0xff800000")
    a("v_mov_b32 v22, v3")
    kread(0, 0)
    a("s_waitcnt lgkmcnt(0)")
    qk(0, "0")
    kread(1, 1024)
    a("s_mov_b32 s28, 0")
    a.label("K2_P1")
    for t in range(4):
        a("s_waitcnt lgkmcnt(0)")
        qk((t + 1) % 2, "0")
        kread(t % 2, (t + 2) * 1024)
        S = SB[t % 2]; m = 20 + (t % 2)
        for j in range(8):
            a(f"v_max3_f32 v{m}, v{m}, v{S+2*j}, v{S+2*j+1}")
    a("v_add_u32 v22, 4096, v22")
    a("s_add_u32 s28, s28, 4")
    a("s_cmp_lt_u32 s28, s52")
    a("s_cbranch_scc1 K2_P1")
    a("v_max_f32 v20, v20, v21")
    a("v_mov_b32 v21, v20")
    a("v_permlane32_swap_b32 v20, v21")
    a("v_max_f32 v20, v20, v21")
    a("s_cmp_eq_u32 s52, 4")
    a(f"s_cselect_b32 s53, {f32hex(-64.0)}, 0")
    a("v_sub_f32 v20, s53, v20")
    for r in range(16): a(f"v_mov_b32 v{CB+r}, v20")
    for r in range(16): a(f"v_mov_b32 v{OACC+r}, 0")
    stamp(a, 2)
    a("s_cmp_lg_u32 s52, 4")
    a("s_cbranch_scc1 K2_NOBAR")
    a("s_waitcnt vmcnt(7)")
    a("s_barrier")
    a.label("K2_NOBAR")
    Cs = f"v[{CB}:{CB+15}]"
    a("v_mov_b32 v22, v3")
    a("v_mov_b32 v23, v6")
    def vread(buf, off):
        a("s_mov_b64 exec, s[30:31]")
        a(f"ds_read_b128 v[{VB[buf]}:{VB[buf]+3}], v23 offset:{off}")
        a(f"ds_read_b128 v[{VB[buf]+4}:{VB[buf]+7}], v23 offset:{off+512}")
        a("s_mov_b64 exec, -1")
    a("s_waitcnt lgkmcnt(0)")
    kread(0, 0)
    a("s_waitcnt lgkmcnt(0)")
    qk(0, Cs)
    kread(1, 1024)
    vread(0, 0)
    a("s_mov_b32 s28, 0")
    a.label("K2_P2")
    for t in range(2):
        S = SB[t]; V = VB[t]
        a("s_waitcnt lgkmcnt(0)")
        qk(1 - t, Cs)
        kread(t, (t + 2) * 1024)
        vread(1 - t, (t + 1) * 1024)
        for j in range(8):
            a(f"v_exp_f32 v{S+2*j}, v{S+2*j}")
            a(f"v_exp_f32 v{S+2*j+1}, v{S+2*j+1}")
            if j >= 1:
                a(f"v_cvt_pk_bf16_f32 v{P+j-1}, v{S+2*j-2}, v{S+2*j-1}")
            if j == 5:
                a(f"v_mfma_f32_32x32x16_bf16 v[{OACC}:{OACC+15}], v[{V}:{V+3}], v[{P}:{P+3}], v[{OACC}:{OACC+15}]")
        a(f"v_cvt_pk_bf16_f32 v{P+7}, v{S+14}, v{S+15}")
        a(f"v_mfma_f32_32x32x16_bf16 v[{OACC}:{OACC+15}], v[{V+4}:{V+7}], v[{P+4}:{P+7}], v[{OACC}:{OACC+15}]")
    a("v_add_u32 v22, 2048, v22")
    a("v_add_u32 v23, 2048, v23")
    a("s_add_u32 s28, s28, 2")
    a("s_cmp_lt_u32 s28, 64")
    a("s_cbranch_scc1 K2_P2")
    stamp(a, 3)
    a("s_cmp_lg_u32 s52, 4")
    a("s_cbranch_scc1 K2_OK")
    a("s_mov_b64 s[54:55], 0")
    a("v_mov_b32 v26, 0x207")
    for r in range(9):
        a(f"v_cmp_class_f32 vcc, v{OACC+r}, v26")
        a("s_or_b64 s[54:55], s[54:55], vcc")
    a("s_cmp_eq_u64 s[54:55], 0")
    a("s_cbranch_scc1 K2_OK")
    a("s_mov_b32 s52, 64")
    a("s_branch K2_P1E")
    a.label("K2_OK")
    a(f"v_mov_b32 v20, v{OACC+8}")
    a(f"v_mov_b32 v21, v{OACC+8}")
    a("v_permlane32_swap_b32 v20, v21")
    a("v_rcp_f32 v21, v20")
    for r in range(8):
        a(f"v_mul_f32 v26, v{OACC+r}, v21")
        a(f"v_fma_f32 v27, -v26, v20, v{OACC+r}")
        a(f"v_fma_f32 v{OACC+r}, v27, v21, v26")
    for j in range(4):
        a(f"v_cvt_pk_bf16_f32 v{28+j}, v{OACC+2*j}, v{OACC+2*j+1}")
    a("s_lshl_b32 s23, s22, 15")
    a("s_lshl_b32 s29, s14, 10")
    a("s_add_u32 s23, s23, s29")
    a(f"s_add_u32 s23, s23, {WS_O}")
    a("buffer_store_dwordx4 v[28:31], v3, s[24:27], s23 offen")
    rt_end(a, 5, wg=0, wave=0, kidx=1)
    a("s_branch K2_END")
    a.label("K2_DOWN")
    a("s_sub_u32 s17, s16, 8")
    a("s_and_b32 s19, s2, 7")
    a("s_lshl_b32 s19, s19, 2")
    a("s_bfe_u32 s20, s2, 0x20003")
    a("s_add_u32 s19, s19, s20")
    a("s_lshr_b32 s20, s2, 5")
    srd(a, 28, 6, 1376 * 1024)
    srd(a, 32, 12, H_BYTES, WS_H)
    srd(a, 36, 4, 2048 * 1024)
    a("v_bfe_u32 v7, v2, 3, 2")
    a("v_bfe_u32 v8, v2, 5, 1")
    a("v_lshl_add_u32 v7, v8, 3, v7")
    a("v_lshlrev_b32 v12, 10, v7")
    a("v_bfe_u32 v7, v2, 2, 1")
    a("v_bfe_u32 v8, v2, 4, 1")
    a("v_xor_b32 v7, v7, v8")
    a("v_lshl_add_u32 v12, v7, 6, v12")
    a("v_and_b32 v8, 3, v2")
    a("v_lshl_add_u32 v12, v8, 4, v12")
    a("s_lshl_b32 s21, s20, 7")
    a("v_add_u32 v12, s21, v12")
    a("v_add_u32 v13, 4096, v12")
    a("v_and_b32 v5, 15, v2")
    a("v_lshrrev_b32 v4, 5, v2")
    a("v_lshrrev_b32 v7, 2, v5")
    a("v_lshl_add_u32 v11, v4, 3, v7")
    a("v_lshlrev_b32 v11, 7, v11")
    a("v_bfe_u32 v7, v2, 3, 1")
    a("v_lshl_add_u32 v11, v7, 6, v11")
    a("v_and_b32 v7, 3, v5")
    a("v_lshl_add_u32 v11, v7, 3, v11")
    a("v_bfe_u32 v7, v2, 4, 1")
    a("v_lshl_add_u32 v11, v7, 5, v11")
    a(f"s_mul_i32 s22, s17, {D_NST*2048}")
    a(f"s_add_u32 s22, s22, {K2_DRING}")
    a("v_add_u32 v11, s22, v11")
    a("v_xor_b32 v10, 64, v11")
    a(f"v_add_u32 v14, {86*1024}, v3")
    a(f"s_mul_i32 s23, s19, {2*86*1024}")
    a(f"s_mul_i32 s40, s17, {22*16384}")
    a(f"s_mul_i32 s41, s17, {22*1024}")
    a("s_add_u32 s41, s41, s23")
    a(f"s_add_u32 s30, s40, {22*16384}")
    a(f"s_min_u32 s30, s30, {1376*1024}")
    DACC = 64; AOP = 16; WB = [40, 48]
    for r in range(64): a(f"v_mov_b32 v{DACC+r}, 0")
    def dissue(st):
        a(f"s_add_u32 m0, s22, {st*2048}")
        a("buffer_load_dwordx4 v12, s[28:31], s40 offen lds")
        a(f"s_add_u32 m0, s22, {st*2048+1024}")
        a("buffer_load_dwordx4 v13, s[28:31], s40 offen lds")
        a(f"buffer_load_dwordx4 v[{AOP+8*st}:{AOP+8*st+3}], v3, s[32:35], s41 offen")
        a(f"buffer_load_dwordx4 v[{AOP+8*st+4}:{AOP+8*st+7}], v14, s[32:35], s41 offen")
        a("s_add_u32 s40, s40, 16384")
        a("s_add_u32 s41, s41, 1024")
    for st in range(D_NST - 1): dissue(st)
    a("s_barrier")
    a("s_barrier")
    a(f"s_setprio {DPRIO}")
    def wreads(st, buf):
        for u in range(2):
            ad = 11 if u == 0 else 10
            b = WB[buf] + 4 * u
            a(f"ds_read_b64_tr_b16 v[{b}:{b+1}], v{ad} offset:{st*2048}")
            a(f"ds_read_b64_tr_b16 v[{b+2}:{b+3}], v{ad} offset:{st*2048+512}")
    a(f"s_waitcnt vmcnt({4*(D_NST-2)})")
    wreads(0, 0)
    a("s_mov_b32 s42, 0")
    a.label("K2_DL")
    for i in range(2 * D_NST):
        st = i % D_NST
        dissue((st + D_NST - 1) % D_NST)
        a(f"s_waitcnt vmcnt({4*(D_NST-2)}) lgkmcnt(0)")
        wreads((st + 1) % D_NST, (i + 1) % 2)
        for rt in range(2):
            for u in range(2):
                d = DACC + 16 * (2 * rt + u); b = WB[i % 2] + 4 * u; ao = AOP + 8 * st + 4 * rt
                a(f"v_mfma_f32_32x32x16_bf16 v[{d}:{d+15}], v[{b}:{b+3}], v[{ao}:{ao+3}], v[{d}:{d+15}]")
    a(f"s_add_u32 s42, s42, {2*D_NST}")
    a("s_cmp_lt_u32 s42, 22")
    a("s_cbranch_scc1 K2_DL")
    a("s_cmp_lg_u32 s17, 0")
    a("s_cbranch_scc1 K2_DST")
    a("v_and_b32 v4, 31, v2")
    a("v_lshrrev_b32 v5, 5, v2")
    a("s_lshl_b32 s48, s19, 6")
    a("v_add_u32 v6, s48, v4")
    a("v_lshlrev_b32 v6, 10, v6")
    a("v_lshl_add_u32 v6, v5, 3, v6")
    a("v_add_u32 v6, s21, v6")
    for rt in range(2):
        a(f"s_mov_b32 s49, {rt*32768}")
        for q in range(8):
            a(f"buffer_load_dwordx2 v[{16+2*q}:{17+2*q}], v6, s[36:39], s49 offen offset:{16*q}")
        a("s_waitcnt vmcnt(0)")
        for u in range(2):
            for q in range(4):
                d = DACC + 16 * (2 * rt + u) + 4 * q; xr = 16 + 2 * (4 * u + q)
                for p in range(2):
                    a(f"v_lshlrev_b32 v44, 16, v{xr+p}")
                    a(f"v_and_b32 v45, 0xffff0000, v{xr+p}")
                    a(f"v_add_f32 v{d+2*p}, v{d+2*p}, v44")
                    a(f"v_add_f32 v{d+2*p+1}, v{d+2*p+1}, v45")
    a.label("K2_DST")
    a("s_lshl_b32 s23, s19, 16")
    a("s_lshl_b32 s48, s20, 12")
    a("s_add_u32 s23, s23, s48")
    a("s_lshl_b32 s48, s17, 21")
    a("s_add_u32 s23, s23, s48")
    a(f"s_add_u32 s23, s23, {WS_P}")
    for rt in range(2):
        for u in range(2):
            d = DACC + 16 * (2 * rt + u)
            for j in range(8):
                a(f"v_cvt_pk_bf16_f32 v{16+j}, v{d+2*j}, v{d+2*j+1}")
            a(f"buffer_store_dwordx4 v[16:19], v3, s[24:27], s23 offen")
            a(f"buffer_store_dwordx4 v[20:23], v3, s[24:27], s23 offen offset:1024")
            a(f"s_add_u32 s23, s23, {2048 if u == 0 else 32768 - 2048}")
    rt_end(a, 2, wg=0, wave=8, base=8, kidx=1)
    a.label("K2_END")
    a("s_endpgm")
    return a.finalize(), 128, 102

K3_LDS = 131072
def gen_k3():
    a = Asm()
    a("s_cmp_ge_u32 s2, 256")
    a("s_cbranch_scc1 K3_END")
    rt_start(a)
    stamp(a, 0)
    a("s_load_dwordx2 s[6:7], s[0:1], 16")
    a("s_load_dwordx2 s[10:11], s[0:1], 56")
    a("s_load_dwordx2 s[12:13], s[0:1], 72")
    a("v_lshrrev_b32 v1, 6, v0")
    a("v_readfirstlane_b32 s16, v1")
    a("v_and_b32 v2, 63, v0")
    a("s_and_b32 s14, s2, 7")
    a("s_lshl_b32 s14, s14, 2")
    a("s_bfe_u32 s15, s2, 0x20003")
    a("s_add_u32 s14, s14, s15")
    a("s_lshr_b32 s15, s2, 5")
    a("s_lshr_b32 s17, s16, 1")
    a("s_and_b32 s18, s16, 1")
    a("s_waitcnt lgkmcnt(0)")
    srd(a, 32, 10, 2048 * 1024)
    srd(a, 24, 12, 0x10000000)
    srd(a, 28, 6, 512 * 1024)
    a("v_lshlrev_b32 v3, 4, v2")
    a("s_lshl_b32 s19, s14, 1")
    a("s_add_u32 s19, s19, s17")
    a("s_lshl_b32 s21, s19, 4")
    a("s_lshl_b32 s22, s15, 1")
    a("s_add_u32 s22, s22, s18")
    a("s_add_u32 s21, s21, s22")
    a("s_lshl_b32 s21, s21, 11")
    a(f"s_add_u32 s21, s21, {WS_P}")
    ACC = 64
    for pq in range(4):
        a(f"buffer_load_dwordx4 v[{80+8*pq}:{83+8*pq}], v3, s[24:27], s21 offen")
        a(f"buffer_load_dwordx4 v[{84+8*pq}:{87+8*pq}], v3, s[24:27], s21 offen offset:1024")
        a(f"s_add_u32 s21, s21, {2 << 20}")
    a("s_lshl_b32 s23, s19, 15")
    a("s_lshl_b32 s40, s18, 14")
    a("s_add_u32 s23, s23, s40")
    a(f"s_add_u32 s23, s23, {WS_O}")
    a("s_lshl_b32 s41, s16, 14")
    perm_row(a, 12, 7, 8)
    a("v_lshlrev_b32 v12, 10, v12")
    a("v_and_b32 v8, 3, v2")
    a("v_lshl_add_u32 v12, v8, 4, v12")
    a("s_lshl_b32 s42, s22, 6")
    a("v_add_u32 v12, s42, v12")
    a("s_lshl_b32 s43, s17, 18")
    a("s_lshl_b32 s44, s18, 15")
    a("s_lshl_b32 s45, s17, 14")
    a("s_add_u32 s44, s44, s45")
    a("s_add_u32 s44, s44, 65536")
    a("s_mov_b32 s46, 0")
    a.label("K3_DMA")
    a("s_mov_b32 m0, s41")
    a("buffer_load_dwordx4 v3, s[24:27], s23 offen lds")
    a("s_mov_b32 m0, s44")
    a("buffer_load_dwordx4 v12, s[28:31], s43 offen lds")
    a("s_add_u32 s23, s23, 1024")
    a("s_add_u32 s41, s41, 1024")
    a("s_add_u32 s43, s43, 16384")
    a("s_add_u32 s44, s44, 1024")
    a("s_add_u32 s46, s46, 1")
    a("s_cmp_lt_u32 s46, 16")
    a("s_cbranch_scc1 K3_DMA")
    a("s_lshl_b32 s47, s17, 15")
    a("v_add_u32 v10, s47, v3")
    tr_addr(a, 11, 7, 8)
    a("s_lshl_b32 s47, s18, 15")
    a("s_add_u32 s47, s47, 65536")
    a("v_add_u32 v11, s47, v11")
    a("s_waitcnt vmcnt(0)")
    for j in range(8):
        a(f"v_lshlrev_b32 v{ACC+2*j}, 16, v{80+j}")
        a(f"v_and_b32 v{ACC+2*j+1}, 0xffff0000, v{80+j}")
        for pq in range(1, 4):
            a(f"v_lshlrev_b32 v40, 16, v{80+8*pq+j}")
            a(f"v_and_b32 v41, 0xffff0000, v{80+8*pq+j}")
            a(f"v_add_f32 v{ACC+2*j}, v{ACC+2*j}, v40")
            a(f"v_add_f32 v{ACC+2*j+1}, v{ACC+2*j+1}, v41")
    a("s_barrier")
    stamp(a, 1)
    OP = [16, 24]
    def reads(buf, off):
        b = OP[buf]
        a(f"ds_read_b128 v[{b}:{b+3}], v10 offset:{off}")
        a(f"ds_read_b64_tr_b16 v[{b+4}:{b+5}], v11 offset:{off}")
        a(f"ds_read_b64_tr_b16 v[{b+6}:{b+7}], v11 offset:{off+256}")
    reads(0, 0)
    a("s_mov_b32 s46, 0")
    a.label("K3_L")
    for s in range(4):
        b = OP[s % 2]
        reads((s + 1) % 2, (s + 1) * 1024)
        a("s_waitcnt lgkmcnt(3)")
        a(f"v_mfma_f32_32x32x16_bf16 v[{ACC}:{ACC+15}], v[{b+4}:{b+7}], v[{b}:{b+3}], v[{ACC}:{ACC+15}]")
    a("v_add_u32 v10, 4096, v10")
    a("v_add_u32 v11, 4096, v11")
    a("s_add_u32 s46, s46, 4")
    a("s_cmp_lt_u32 s46, 32")
    a("s_cbranch_scc1 K3_L")
    a("v_and_b32 v4, 31, v2")
    a("v_lshrrev_b32 v5, 5, v2")
    a("s_lshl_b32 s47, s19, 5")
    a("v_add_u32 v6, s47, v4")
    a("v_lshlrev_b32 v6, 10, v6")
    a("v_lshl_add_u32 v6, v5, 3, v6")
    a("v_add_u32 v6, s42, v6")
    for q in range(4):
        a(f"v_cvt_pk_bf16_f32 v{32+2*q}, v{ACC+4*q}, v{ACC+4*q+1}")
        a(f"v_cvt_pk_bf16_f32 v{33+2*q}, v{ACC+4*q+2}, v{ACC+4*q+3}")
        a(f"buffer_store_dwordx2 v[{32+2*q}:{33+2*q}], v6, s[32:35], 0 offen offset:{16*q}")
    rt_end(a, 3, wg=0, wave=0, kidx=2)
    a.label("K3_END")
    a("s_endpgm")
    return a.finalize(), 128, 102

def desc(name, nv, ns):
    return f""".amdhsa_kernel {name}
  .amdhsa_next_free_vgpr {nv}
  .amdhsa_next_free_sgpr {ns}
  .amdhsa_accum_offset {nv}
  .amdhsa_group_segment_fixed_size 0
  .amdhsa_kernarg_size 80
  .amdhsa_user_sgpr_count 2
  .amdhsa_user_sgpr_kernarg_segment_ptr 1
  .amdhsa_system_sgpr_workgroup_id_x 1
.end_amdhsa_kernel"""

def build(path):
    ks = [("k0_kernel", gen_k0(), 128, 256, 0), ("k1_kernel", gen_k1(), 256, 576, K1_LDS), ("k2_kernel", gen_k2(), 256, 768, K2_LDS), ("k3_kernel", gen_k3(), 256, 256, K3_LDS + 1024)]
    out = []
    for n, _, g, b, l in ks:
        out.append(f"; @launch kernel={n} grid=({g},1,1) block=({b},1,1) lds={l}")
    out += ['.amdgcn_target "amdgcn-amd-amdhsa--gfx950"', ".text"]
    for n, (txt, nv, ns), *_ in ks:
        out += [f".globl {n}", ".p2align 8", f".type {n},@function", f"{n}:", txt]
    out.append('.section .rodata,"a"')
    for n, (txt, nv, ns), *_ in ks:
        out += [".p2align 6", desc(n, nv, ns)]
    txt = "\n".join(out) + "\n"
    lines = []
    for ln in txt.split("\n"):
        if ln.strip().startswith("buffer_store") and ("s[24:27]" in ln or (WT_OUT and "s[32:35]" in ln)) and "offset:132" not in ln:
            ln = ln + " sc0 sc1"
        lines.append(ln)
    open(path, "w").write("\n".join(lines))

if __name__ == "__main__":
    if "stamp" in sys.argv: STAMP = True
    if "wtout" in sys.argv: WT_OUT = True
    for x in sys.argv:
        if x.startswith("dprio="): DPRIO = int(x[6:])
        if x.startswith("yprio="): YPRIO = int(x[6:])
    build(sys.argv[1])
```
